```python
import torch

def _softmax(x, axis=-1):
    return torch.softmax(x, dim=axis)
def _gelu(x):
    return torch.nn.functional.gelu(x, approximate="tanh")
def _silu(x):
    return torch.nn.functional.silu(x)
def _sigmoid(x):
    return torch.sigmoid(x)
def _layernorm(x, axis=-1, eps=1e-5):
    m = x.mean(dim=axis, keepdim=True)
    v = x.var(dim=axis, keepdim=True, unbiased=False)
    return (x - m) / torch.sqrt(v + eps)
def _scatter_add(tgt, idx, src, axis=0):
    return tgt.clone().index_add_(axis, idx, src)
def _segment_sum(src, seg, n):
    out = torch.zeros((n,) + src.shape[1:], dtype=src.dtype)
    return out.index_add_(0, seg, src)
def _pad(x, pw):
    flat = tuple(v for pair in reversed(pw) for v in pair)
    return torch.nn.functional.pad(x, flat)

kernel_name = 'sequential_preLN__ssm_conv_h3__mixer_token_mlp__prompt'

def setup_inputs():

    _w = (lambda a: (lambda t: t.to(torch.bfloat16) if t.is_floating_point() else t)(torch.as_tensor(a)))
    def _A_setup():
        B, S, D = 1, 2048, 448
        ks = 4
        return {
            "q": _w((lambda *s: torch.randn(*s, dtype=torch.bfloat16) * 0.05)(B, S, D)),
            "k": _w((lambda *s: torch.randn(*s, dtype=torch.bfloat16) * 0.2)(B, S, D)),
            "v": _w((lambda *s: torch.randn(*s, dtype=torch.bfloat16) * 0.2)(B, S, D)),
            "shift_k": _w((lambda *s: torch.randn(*s, dtype=torch.bfloat16) * 0.2)(D, ks) * 0.5),
            "ssm_k": _w((lambda *s: torch.randn(*s, dtype=torch.bfloat16) * 0.4)(D, S) * (1.0 / S ** 0.5)),
            "ssm_D": _w((lambda *s: torch.randn(*s, dtype=torch.bfloat16) * 0.2)(D)),
        }
    _A_in = _A_setup()

    def _B_setup():
        B, S, D, F = 1, 2048, 448, 1792
        return {
            "x": _w((lambda *s: torch.randn(*s, dtype=torch.bfloat16) * 0.05)(B, S, D)),
            "w1": _w((lambda *s: torch.randn(*s, dtype=torch.bfloat16) * 0.4)(S, F) * (S ** -0.5)),
            "b1": _w((lambda *s: torch.randn(*s, dtype=torch.bfloat16) * 3.2)(F) * 0.02),
            "w2": _w((lambda *s: torch.randn(*s, dtype=torch.bfloat16) * 0.2)(F, S) * (F ** -0.5)),
            "b2": _w((lambda *s: torch.randn(*s, dtype=torch.bfloat16) * 0.4)(S) * 0.02),
        }
    _B_in = _B_setup()

    return {
        "A_q": _A_in["q"],
        "A_k": _A_in["k"],
        "A_v": _A_in["v"],
        "A_shift_k": _A_in["shift_k"],
        "A_ssm_k": _A_in["ssm_k"],
        "A_ssm_D": _A_in["ssm_D"],
        "B_x": _B_in["x"],
        "B_w1": _B_in["w1"],
        "B_b1": _B_in["b1"],
        "B_w2": _B_in["w2"],
        "B_b2": _B_in["b2"],
    }

def reference(A_q, A_k, A_v, A_shift_k, A_ssm_k, A_ssm_D, B_x, B_w1, B_b1, B_w2, B_b2):
    def _A_ref(q, k, v, shift_k, ssm_k, ssm_D):
        B, S, D = q.shape
        ks = shift_k.shape[-1]
        k_pad = _pad(k, ((0, 0), (ks - 1, 0), (0, 0)))
        k_shift = torch.zeros_like(k)
        for t in range(ks):
            k_shift = k_shift + k_pad[:, t:t + S, :] * shift_k[:, ks - 1 - t][None, None, :]
        kv = k_shift * v
        L = 2 * S
        kv_pad = _pad(kv, ((0, 0), (0, S), (0, 0)))
        kf_pad = _pad(ssm_k, ((0, 0), (0, S)))
        kv_f = (lambda x, axes=(-2,-1): torch.fft.rfft2(x.float(), dim=axes))(kv_pad[:, None, :, :], axes=(1, 2))
        kf_f = (lambda x, axes=(-2,-1): torch.fft.rfft2(x.float(), dim=axes))(kf_pad[:, None, :], axes=(1, 2))
        kf_f = (lambda x, *d: x.permute(*d))(kf_f, 1, 2, 0)
        y_f = kv_f * kf_f[None, :, :, :]
        y = (lambda x, s, axes=(-2,-1): torch.fft.irfft2(x, s=s, dim=axes).to(torch.bfloat16))(y_f, (1, L), axes=(1, 2))[:, 0, :S, :]
        y = y + kv * ssm_D[None, None, :]
        return q * y

    def _B_ref(x, w1, b1, w2, b2):
        B, S, D = x.shape
        h = _layernorm(x, axis=-1)
        u = torch.einsum("bsd,sf->bdf", h, w1) + b1
        u = _gelu(u)
        y = torch.einsum("bdf,fs->bds", u, w2) + b2
        return (lambda x, *d: x.permute(*d))(y, 0, 2, 1)

    x = A_q
    h = x + _A_ref(_layernorm(x, axis=-1), A_k, A_v, A_shift_k, A_ssm_k, A_ssm_D)
    h2 = h + _B_ref(_layernorm(h, axis=-1), B_w1, B_b1, B_w2, B_b2)
    return h2
```

```python
KNAME = "sequential_preLN__ssm_conv_h3__mixer_token_mlp__prompt_kernel"

class A:
    def __init__(self):
        self.lines = []
        self._uid = 0
    def __call__(self, s=""):
        for l in s.split("\n"):
            self.lines.append(l)
    def label(self, name):
        self.lines.append(name + ":")
    def uid(self, base="L"):
        self._uid += 1
        return f"{base}_{self._uid}"
    def text(self):
        return "\n".join(self.lines) + "\n"

def kernel_open(a, name):
    a(f".globl {name}")
    a(".p2align 8")
    a(f".type {name},@function")
    a(f"{name}:")

def kernel_desc(a, name, vgpr=256, agpr=0, sgpr=102, wgy=False):
    acc = (vgpr + 3) // 4 * 4
    a('.section .rodata,"a"')
    a(".p2align 6")
    a(f".amdhsa_kernel {name}")
    a(f"  .amdhsa_next_free_vgpr {acc + agpr if agpr else vgpr}")
    a(f"  .amdhsa_next_free_sgpr {sgpr}")
    a(f"  .amdhsa_accum_offset {acc}")
    a("  .amdhsa_group_segment_fixed_size 0")
    a("  .amdhsa_kernarg_size 112")
    a("  .amdhsa_user_sgpr_count 2")
    a("  .amdhsa_user_sgpr_kernarg_segment_ptr 1")
    a("  .amdhsa_system_sgpr_workgroup_id_x 1")
    if wgy:
        a("  .amdhsa_system_sgpr_workgroup_id_y 1")
    a("  .amdhsa_float_denorm_mode_32 3")
    a(".end_amdhsa_kernel")
    a(".text")

def header(a, launches):
    for (k, g, b, lds) in launches:
        if k is None:
            a(f"; @launch grid=({g},1,1) block=({b},1,1) lds={lds}")
        else:
            a(f"; @launch kernel={k} grid=({g},1,1) block=({b},1,1) lds={lds}")
    a('.amdgcn_target "amdgcn-amd-amdhsa--gfx950"')
    a(".text")

ARG = dict(q=0, k=8, v=16, shift_k=24, ssm_k=32, ssm_D=40, x=48, w1=56, b1=64, w2=72, b2=80, out=88, dbg=96, ws=104)

def srd(a, base, ptr, nbytes):
    a(f"s_mov_b32 s{base}, s{ptr}")
    a(f"s_and_b32 s{base+1}, s{ptr+1}, 0xffff")
    a(f"s_mov_b32 s{base+2}, {nbytes:#x}")
    a(f"s_mov_b32 s{base+3}, 0x20000")
```

```python
import sys
from asmlib import A, KNAME

S, D, F = 2048, 448, 1792
NWG = 256
BIG = 0x80000000

EPOCH = 0
FLAG0, FLAG1, FLAG2, FLAG3 = 0x10000, 0x20000, 0x30000, 0x40000
FSTR = 64
KVT, YT, HNT, HH, UT = 0x100000, 0x300000, 0x500000, 0x700000, 0x900000
PROF = 0xC00000
WS_BYTES = 0x1000000
OCT = D * 16

sQ, sK, sV, sSK, sSS, sDD, sW1, sB1, sW2, sB2, sOUT, sWS = 4, 8, 12, 16, 20, 24, 28, 32, 36, 40, 44, 48
sWV, sNONCE, sBUD, sX, sY, sCT, sDT, sNT = 52, 53, 54, 55, 56, 57, 58, 59
sT0, sT1, sT2, sT3, sT4, sT5 = 60, 61, 62, 63, 64, 65
sMASK = 66
sROLE = 67
sST = 68
sEX = 84
sP0, sP1 = 86, 88
sC1, sC2 = 90, 91
sOFF = 92
sPI = 93

L_TOEP = 0
TOEP_CH = 34816
TOEP_P = 4352
L_U = 69632
U_CH = 7680
L_STATS = 163328
LDS_BYTES = 163840


class G(A):
    def __init__(self, profile=False):
        super().__init__()
        self.vm = 0
        self.lg = 0
        self.profile = profile
        self.nstamp = 0
    def vmem(self, s):
        self(s); self.vm += 1
        return self.vm
    def wait_vm(self, opid):
        n = self.vm - opid
        assert n >= 0
        self(f"s_waitcnt vmcnt({min(n, 63)})")
    def wait_vm_all(self):
        self("s_waitcnt vmcnt(0)")
    def ds(self, s):
        self(s); self.lg += 1
        return self.lg
    def wait_lg(self, opid):
        n = self.lg - opid
        assert n >= 0
        self(f"s_waitcnt lgkmcnt({min(n, 15)})")
    def wait_lg_all(self):
        self("s_waitcnt lgkmcnt(0)")
    def nop(self, n):
        while n > 0:
            k = min(n, 16)
            self(f"s_nop {k-1}")
            n -= k
    def stamp(self, name):
        if not self.profile:
            return
        i = self.nstamp; self.nstamp += 1
        self(f"s_memrealtime s[{sP0}:{sP0+1}]")
        self("s_waitcnt lgkmcnt(0)")
        self(f"v_mov_b32 v250, s{sP0}")
        self(f"s_lshl_b32 s{sP1}, s2, 2")
        self(f"s_add_u32 s{sP1}, s{sP1}, s{sWV}")
        self(f"s_lshl_b32 s{sP1}, s{sP1}, 7")
        self(f"s_add_u32 s{sP1}, s{sP1}, {PROF + 4*i}")
        self(f"v_mov_b32 v251, s{sP1}")
        self(f"s_mov_b64 s[{sP0}:{sP0+1}], exec")
        self("s_mov_b64 exec, 1")
        self.vmem(f"buffer_store_dword v250, v251, s[{sWS}:{sWS+3}], 0 offen")
        self(f"s_mov_b64 exec, s[{sP0}:{sP0+1}]")


def r(base, n):
    return f"v[{base}:{base+n-1}]"
def ar(base, n):
    return f"a[{base}:{base+n-1}]"
def sr(base, n=4):
    return f"s[{base}:{base+n-1}]"


def prologue(g):
    g(f"s_cmp_ge_u32 s2, {NWG}")
    g("s_cbranch_scc1 L_exit")
    for sreg, off in ((sQ, 0), (sK, 8), (sV, 16), (sSK, 24), (sSS, 32), (sDD, 40), (sW1, 56), (sB1, 64),
                      (sW2, 72), (sB2, 80), (sOUT, 88), (sWS, 104)):
        g(f"s_load_dwordx2 s[{sreg}:{sreg+1}], s[0:1], {off}")
    for sreg, nb in ((sQ, S*D*2), (sK, S*D*2), (sV, S*D*2), (sSK, D*8), (sSS, D*S*2), (sDD, D*2), (sW1, S*F*2),
                     (sB1, F*2), (sW2, S*F*2), (sB2, S*2), (sOUT, S*D*2), (sWS, WS_BYTES)):
        g(f"s_mov_b32 s{sreg+2}, {nb:#x}")
        g(f"s_mov_b32 s{sreg+3}, 0x20000")
    g("v_lshrrev_b32 v2, 6, v0")
    g("v_and_b32 v1, 63, v0")
    g(f"v_readfirstlane_b32 s{sWV}, v2")
    g(f"s_mov_b32 s{sMASK}, 0xffff0000")
    g(f"s_mov_b32 s{sBUD}, 0x40000")
    g(f"s_and_b32 s{sX}, s2, 7")
    g(f"s_lshr_b32 s{sY}, s2, 3")
    g(f"s_mul_i32 s{sCT}, s{sX}, 28")
    g(f"s_add_u32 s{sCT}, s{sCT}, s{sY}")
    g("s_waitcnt lgkmcnt(0)")


def unpack_lo(g, dst, src): g(f"v_lshlrev_b32 v{dst}, 16, v{src}")
def unpack_hi(g, dst, src): g(f"v_and_b32 v{dst}, s{sMASK}, v{src}")


def publish(g, flagbase, s_index):
    g.wait_vm_all()
    g(f"s_lshl_b32 s{sT0}, s{s_index}, 2")
    g(f"s_add_u32 s{sT0}, s{sT0}, s{sWV}")
    g(f"s_mul_i32 s{sT0}, s{sT0}, {FSTR}")
    g(f"s_add_u32 s{sT0}, s{sT0}, {flagbase}")
    g(f"v_mov_b32 v2, s{sT0}")
    g(f"v_mov_b32 v3, s{sNONCE}")
    g(f"s_mov_b64 s[{sEX}:{sEX+1}], exec")
    g("s_mov_b64 exec, 1")
    g.vmem(f"buffer_store_dword v3, v2, {sr(sWS)}, 0 offen sc1")
    g(f"s_mov_b64 exec, s[{sEX}:{sEX+1}]")


def poll(g, vaddrs, vtmp):
    L = g.uid("L_poll"); Lok = g.uid("L_pollok")
    g.label(L)
    for i, va in enumerate(vaddrs):
        g(f"buffer_load_dword v{vtmp+i}, v{va}, {sr(sWS)}, 0 offen sc1")
    g("s_waitcnt vmcnt(0)")
    g(f"v_cmp_ne_u32 vcc, s{sNONCE}, v{vtmp}")
    for i in range(1, len(vaddrs)):
        g(f"v_cmp_ne_u32 s[{sEX}:{sEX+1}], s{sNONCE}, v{vtmp+i}")
        g("s_nop 1")
        g(f"s_or_b64 vcc, vcc, s[{sEX}:{sEX+1}]")
    g("s_nop 1")
    g(f"s_cbranch_vccz {Lok}")
    g(f"s_sub_u32 s{sBUD}, s{sBUD}, 1")
    g(f"s_cmp_gt_i32 s{sBUD}, 0")
    g(f"s_cbranch_scc1 {L}")
    g.label(Lok)
    g.vm = g.vm


vKR, vVR, vQR, vSKR, vDR, vEP = 8, 20, 28, 36, 40, 41
vSW0, vSW1, vSWX = 44, 52, 60
vKF, vSKP = 68, 90
vKVF = 98
vKVP = 116
vTMP = 124
vQF, vQN, vKVD = 176, 192, 208


def p0(g):
    g(f"s_mul_i32 s{sT0}, s2, {OCT}")
    g("v_lshlrev_b32 v2, 2, v0")
    g(f"v_add_u32 v3, s{sT0}, v2")
    g(f"v_mov_b32 v4, {BIG:#x}")
    g(f"v_cmp_gt_u32 vcc, 224, v0")
    g("s_nop 1")
    g("v_cndmask_b32 v3, v4, v3, vcc")
    g(f"v_add_u32 v5, {5*896}, v3")
    g(f"v_subrev_u32 v6, {3*896}, v3")
    g("s_cmp_eq_u32 s2, 0")
    g(f"s_cselect_b32 s{sT1}, 1, 0")
    g(f"v_cmp_eq_u32 vcc, 1, s{sT1}" if False else f"v_mov_b32 v7, s{sT1}")
    g("v_cmp_eq_u32 vcc, 1, v7")
    g("s_nop 1")
    g("v_cndmask_b32 v6, v6, v4, vcc")
    g("v_mov_b32 v7, 0")
    ids = {}
    g.vmem(f"buffer_load_dword v{vEP}, v7, {sr(sWS)}, 0 offen sc1")
    def rowload(dst, srd, rr):
        if rr < 0:
            return g.vmem(f"buffer_load_dword v{dst}, v6, {sr(srd)}, 0 offen offset:{(rr+3)*896}")
        if rr < 5:
            return g.vmem(f"buffer_load_dword v{dst}, v3, {sr(srd)}, 0 offen offset:{rr*896}")
        return g.vmem(f"buffer_load_dword v{dst}, v5, {sr(srd)}, 0 offen offset:{(rr-5)*896}")
    g("v_lshlrev_b32 v7, 4, v0")
    g.vmem(f"buffer_load_dwordx4 {r(vSKR,4)}, v7, {sr(sSK)}, 0 offen")
    for rr in range(-3, 8):
        rowload(vKR + rr + 3, sK, rr)
    for rr in range(8):
        ids['v'] = rowload(vVR + rr, sV, rr)
    for rr in range(8):
        rowload(vQR + rr, sQ, rr)
    ids['q'] = g.vmem(f"buffer_load_dword v{vDR}, v2, {sr(sDD)}, 0 offen")
    g(f"s_lshl_b32 s{sT0}, s{sCT}, 13")
    g(f"v_add_u32 v8, s{sT0}, v7") if False else None
    g(f"v_add_u32 v{vTMP}, s{sT0}, v7")
    g(f"v_subrev_u32 v{vTMP+1}, 64, v{vTMP}")
    g(f"v_subrev_u32 v{vTMP+2}, 48, v{vTMP}")
    g("v_cmp_le_u32 vcc, 4, v0")
    g("s_nop 1")
    g(f"v_cndmask_b32 v{vTMP+1}, v4, v{vTMP+1}, vcc")
    g("v_cmp_le_u32 vcc, 3, v0")
    g("s_nop 1")
    g(f"v_cndmask_b32 v{vTMP+2}, v4, v{vTMP+2}, vcc")
    g(f"s_mov_b32 s{sT1}, 4096")
    g.vmem(f"buffer_load_dwordx4 {r(vSW0,4)}, v{vTMP+1}, {sr(sSS)}, 0 offen")
    g.vmem(f"buffer_load_dwordx4 {r(vSW0+4,4)}, v{vTMP+2}, {sr(sSS)}, 0 offen")
    g.vmem(f"buffer_load_dwordx4 {r(vSW1,4)}, v{vTMP+1}, {sr(sSS)}, s{sT1} offen")
    g.vmem(f"buffer_load_dwordx4 {r(vSW1+4,4)}, v{vTMP+2}, {sr(sSS)}, s{sT1} offen")
    g("v_cmp_le_u32 vcc, 3, v1")
    g("v_mov_b32 v7, 0")
    g(f"v_mov_b32 v{vTMP+3}, {4096 - 48}")
    g(f"v_cndmask_b32 v7, v7, v{vTMP+3}, vcc")
    g(f"v_lshlrev_b32 v{vTMP+3}, 4, v1")
    g(f"v_add3_u32 v7, v7, v{vTMP+3}, s{sT0}")
    g(f"v_add_u32 v7, {16*256 - 64}, v7")
    g("v_cmp_gt_u32 vcc, 6, v1")
    g("s_nop 1")
    g("v_cndmask_b32 v7, v4, v7, vcc")
    g.vmem(f"buffer_load_dwordx4 {r(vSWX,4)}, v7, {sr(sSS)}, 0 offen")
    ids['ssm'] = g.vmem(f"buffer_load_dwordx4 {r(vSWX+4,4)}, v7, {sr(sSS)}, 0 offen offset:16")
    g.stamp("p0 loads issued")
    g.wait_vm(ids['v'])
    g(f"v_readfirstlane_b32 s{sNONCE}, v{vEP}")
    for j in range(4):
        src0 = vSKR + (j >> 1); src1 = vSKR + 2 + (j >> 1)
        (unpack_hi if j & 1 else unpack_lo)(g, vSKP + 2*j, src0)
        (unpack_hi if j & 1 else unpack_lo)(g, vSKP + 2*j + 1, src1)
    g(f"s_add_u32 s{sNONCE}, s{sNONCE}, 0x9e3779b9")
    for i in range(11):
        unpack_lo(g, vKF + 2*i, vKR + i)
        unpack_hi(g, vKF + 2*i + 1, vKR + i)
    for rr in range(8):
        d = vKVF + 2*rr
        kf = lambda q: vKF + 2*(q + 3)
        g(f"v_pk_mul_f32 {r(d,2)}, {r(kf(rr),2)}, {r(vSKP,2)}")
        for j in (1, 2, 3):
            g(f"v_pk_fma_f32 {r(d,2)}, {r(kf(rr-j),2)}, {r(vSKP+2*j,2)}, {r(d,2)}")
        unpack_lo(g, vTMP, vVR + rr)
        unpack_hi(g, vTMP + 1, vVR + rr)
        g(f"v_pk_mul_f32 {r(d,2)}, {r(d,2)}, {r(vTMP,2)}")
    for c in range(2):
        for i in range(4):
            g(f"v_cvt_pk_bf16_f32 v{vKVP + 4*c + i}, v{vKVF + 2*(7-2*i) + c}, v{vKVF + 2*(6-2*i) + c}")
    g(f"s_mul_i32 s{sT0}, s2, {OCT}")
    g(f"s_add_u32 s{sT0}, s{sT0}, {KVT}")
    g("v_lshlrev_b32 v7, 5, v0")
    g(f"v_add_u32 v7, s{sT0}, v7")
    g("v_cmp_gt_u32 vcc, 224, v0")
    g("s_nop 1")
    g("v_cndmask_b32 v7, v4, v7, vcc")
    g.vmem(f"buffer_store_dwordx4 {r(vKVP,4)}, v7, {sr(sWS)}, 0 offen sc1")
    g.vmem(f"buffer_store_dwordx4 {r(vKVP+4,4)}, v7, {sr(sWS)}, 0 offen offset:16 sc1")
    g.stamp("p0 stores issued")
    publish(g, FLAG0, 2)
    g.stamp("p0 published")


def toeplitz_pass(g, w, vaddr, ch_off):
    XE, XO, WO = 128, 136, 144
    for i in range(6):
        g(f"v_alignbit_b32 v{XE+i}, v{w+i+1}, v{w+i}, 16")
    for i in range(6):
        g(f"v_alignbit_b32 v{XO+i}, v{w+i+2}, v{w+i+1}, 16")
    for i in range(6):
        g(f"v_mov_b32 v{WO+i}, v{w+i+1}")
    src = {0: XE, 4: XE+2, 2: XO, 6: XO+2, 3: w+2, 7: w+4, 1: WO, 5: WO+2}
    for p in range(8):
        g.ds(f"ds_write_b128 v{vaddr}, {r(src[p],4)} offset:{ch_off + p*TOEP_P + 64*(p&3)}")


def rowstats(g, va, vb, mode):
    for i in range(8):
        g(f"v_permlane32_swap_b32 v{va+i}, v{vb+i}")
    for i in range(8):
        g(f"v_add_f32 v{va+i}, v{va+i}, v{vb+i}")
    g("s_nop 0")
    for i in range(4):
        g(f"v_permlane16_swap_b32 v{va+i}, v{va+4+i}")
    for i in range(4):
        g(f"v_add_f32 v{va+i}, v{va+i}, v{va+4+i}")
    for rot in (8, 4, 2, 1):
        for i in range(4):
            g(f"v_add_f32_dpp v{va+i}, v{va+i}, v{va+i} row_ror:{rot} row_mask:0xf bank_mask:0xf")
    g("v_lshrrev_b32 v2, 4, v1")
    g("v_lshrrev_b32 v3, 1, v2")
    g("v_and_b32 v2, 1, v2")
    g("v_lshlrev_b32 v3, 7, v3")
    g("v_lshl_add_u32 v2, v2, 6, v3")
    g(f"s_lshl_b32 s{sT0}, s{sWV}, 2")
    g(f"s_add_u32 s{sT0}, s{sT0}, {L_STATS}")
    g(f"v_add_u32 v2, s{sT0}, v2")
    g(f"s_mov_b64 s[{sEX}:{sEX+1}], exec")
    g(f"s_mov_b32 exec_lo, 0x00010001")
    g(f"s_mov_b32 exec_hi, 0x00010001")
    for i in range(4):
        g.ds(f"ds_write_b32 v2, v{va+i} offset:{16*i}")
    g(f"s_mov_b64 exec, s[{sEX}:{sEX+1}]")
    g.wait_lg_all()
    g("s_barrier")
    g("v_and_b32 v2, 7, v1")
    g("v_lshlrev_b32 v2, 4, v2")
    g(f"v_add_u32 v2, {L_STATS}, v2")
    g.ds(f"ds_read_b128 {r(va,4)}, v2")
    g.ds(f"ds_read_b128 {r(va+4,4)}, v2 offset:128")
    g(f"s_mov_b32 s{sT0}, {1.0/D!r}" if False else f"s_mov_b32 s{sT0}, 0x3b124925")
    g(f"s_mov_b32 s{sT1}, 0x3727c5ac")
    g.wait_lg_all()
    g(f"v_add_f32 v{va}, v{va}, v{va+1}")
    g(f"v_add_f32 v{va+4}, v{va+4}, v{va+5}")
    g(f"v_add_f32 v{va+2}, v{va+2}, v{va+3}")
    g(f"v_add_f32 v{va+6}, v{va+6}, v{va+7}")
    g(f"v_add_f32 v{va}, v{va}, v{va+2}")
    g(f"v_add_f32 v{va+4}, v{va+4}, v{va+6}")
    g(f"v_mul_f32 v{va}, s{sT0}, v{va}")
    g(f"v_mul_f32 v{va+4}, s{sT0}, v{va+4}")
    g(f"v_fma_f32 v{va+4}, -v{va}, v{va}, v{va+4}")
    g(f"v_max_f32 v{va+4}, 0, v{va+4}")
    g(f"v_add_f32 v{va+5}, s{sT1}, v{va+4}")
    g(f"v_rsq_f32 v{va+5}, v{va+5}")
    if mode == "ln2":
        g("s_nop 0")
        g(f"v_mul_f32 v{va+6}, v{va+5}, v{va+5}")
        g(f"v_mul_f32 v{va+6}, v{va+6}, v{va+4}")
        g(f"v_add_f32 v{va+6}, s{sT1}, v{va+6}")
        g(f"v_rsq_f32 v{va+6}, v{va+6}")
        g("s_nop 0")
        g(f"v_mul_f32 v{va+5}, v{va+5}, v{va+6}")
    g("s_nop 1")
    for i in range(8):
        g(f"v_readlane_b32 s{sST+2*i}, v{va}, {i}")
        g(f"v_readlane_b32 s{sST+2*i+1}, v{va+5}, {i}")
    g("s_barrier")
    g("s_nop 1")


def slot_a(g):
    g.wait_vm_all()
    Lskip = g.uid("L_noconv")
    g(f"s_cmp_ge_u32 s{sY}, 28")
    g(f"s_cbranch_scc1 {Lskip}")
    g("v_lshlrev_b32 v2, 4, v0")
    toeplitz_pass(g, vSW0, 2, L_TOEP)
    toeplitz_pass(g, vSW1, 2, L_TOEP + TOEP_CH)
    Lx = g.uid("L_noextra")
    g(f"s_cmp_eq_u32 s{sWV}, 0")
    g(f"s_cbranch_scc0 {Lx}")
    g("v_cmp_le_u32 vcc, 3, v1")
    g("v_mov_b32 v2, 0")
    g(f"v_mov_b32 v3, {TOEP_CH - 48}")
    g("v_cndmask_b32 v2, v2, v3, vcc")
    g("v_lshlrev_b32 v3, 4, v1")
    g("v_add_u32 v2, v2, v3")
    g(f"v_add_u32 v2, {16*256}, v2")
    g(f"s_mov_b64 s[{sEX}:{sEX+1}], exec")
    g("s_mov_b64 exec, 0x3f")
    toeplitz_pass(g, vSWX, 2, L_TOEP)
    g(f"s_mov_b64 exec, s[{sEX}:{sEX+1}]")
    g.label(Lx)
    g("v_mov_b32 v128, 0\nv_mov_b32 v129, 0\nv_mov_b32 v130, 0\nv_mov_b32 v131, 0")
    g("v_lshlrev_b32 v2, 4, v0")
    g(f"v_add_u32 v2, {L_U}, v2")
    g("v_cmp_gt_u32 vcc, 160, v0")
    g(f"s_and_saveexec_b64 s[{sEX}:{sEX+1}], vcc")
    Lz = g.uid("L_noz")
    g(f"s_cbranch_execz {Lz}")
    g.ds(f"ds_write_b128 v2, v[128:131]")
    g.ds(f"ds_write_b128 v2, v[128:131] offset:{U_CH}")
    g.label(Lz)
    g(f"s_mov_b64 exec, s[{sEX}:{sEX+1}]")
    g.label(Lskip)
    for rr in range(8):
        unpack_lo(g, vQF + 2*rr, vQR + rr)
        unpack_hi(g, vQF + 2*rr + 1, vQR + rr)
    va, vb = 128, 136
    for rr in range(8):
        g(f"v_add_f32 v{va+rr}, v{vQF+2*rr}, v{vQF+2*rr+1}")
        g(f"v_mul_f32 v{vb+rr}, v{vQF+2*rr}, v{vQF+2*rr}")
        g(f"v_fmac_f32 v{vb+rr}, v{vQF+2*rr+1}, v{vQF+2*rr+1}")
    g("s_nop 1")
    rowstats(g, va, vb, "ln1")
    for rr in range(8):
        g(f"v_pk_add_f32 {r(vQN+2*rr,2)}, {r(vQF+2*rr,2)}, s[{sST+2*rr}:{sST+2*rr+1}] op_sel:[0,0] op_sel_hi:[1,0] neg_lo:[0,1] neg_hi:[0,1]")
        g(f"v_pk_mul_f32 {r(vQN+2*rr,2)}, {r(vQN+2*rr,2)}, s[{sST+2*rr}:{sST+2*rr+1}] op_sel:[0,1] op_sel_hi:[1,1]")
    unpack_lo(g, 128, vDR)
    unpack_hi(g, 129, vDR)
    for rr in range(8):
        i = (7 - rr) >> 1
        for c in range(2):
            (unpack_lo if rr & 1 else unpack_hi)(g, vKVD + 2*rr + c, vKVP + 4*c + i)
        g(f"v_pk_mul_f32 {r(vKVD+2*rr,2)}, {r(vKVD+2*rr,2)}, v[128:129]")
    g.stamp("slot A done")


vACC0, vACC1, vFR = 64, 80, 96


def p1(g):
    Lskip = g.uid("L_noconv")
    g(f"s_cmp_ge_u32 s{sY}, 28")
    g(f"s_cbranch_scc1 {Lskip}")
    g(f"s_lshr_b32 s{sT0}, s{sCT}, 6")
    g(f"s_mul_i32 s{sT0}, s{sT0}, {FSTR}")
    g(f"s_add_u32 s{sT0}, s{sT0}, {FLAG0}")
    g(f"v_mul_u32_u24 v2, {4*FSTR}, v0")
    g(f"v_add_u32 v2, s{sT0}, v2")
    g(f"s_lshl_b32 s{sT1}, s{sCT}, 5")
    g(f"s_add_u32 s{sT1}, s{sT1}, {KVT}")
    g(f"v_mul_u32_u24 v3, {OCT}, v0")
    g(f"v_add_u32 v3, s{sT1}, v3")
    poll(g, [2], 8)
    g.stamp("p1 flags seen")
    g.vmem(f"buffer_load_dwordx4 v[8:11], v3, {sr(sWS)}, 0 offen sc1")
    i2 = g.vmem(f"buffer_load_dwordx4 v[12:15], v3, {sr(sWS)}, 0 offen offset:16 sc1")
    g("v_lshrrev_b32 v4, 2, v0")
    g("v_mul_u32_u24 v4, 80, v4")
    g("v_and_b32 v5, 3, v0")
    g("v_lshl_add_u32 v4, v5, 4, v4")
    g(f"v_add_u32 v4, {L_U + 32*80}, v4")
    g("v_and_b32 v6, 31, v1")
    g("v_lshrrev_b32 v7, 5, v1")
    g(f"s_lshr_b32 s{sT0}, s{sWV}, 1")
    g(f"s_and_b32 s{sT1}, s{sWV}, 1")
    g("v_and_b32 v17, 7, v6")
    g(f"v_mul_u32_u24 v16, {TOEP_P}, v17")
    g("v_and_b32 v17, 3, v6")
    g("v_lshl_add_u32 v16, v17, 6, v16")
    g("v_lshrrev_b32 v17, 3, v6")
    g("v_lshl_add_u32 v16, v17, 4, v16")
    g("v_lshlrev_b32 v17, 4, v7")
    g("v_sub_u32 v16, v16, v17")
    g(f"s_mul_i32 s{sT2}, s{sT0}, {TOEP_CH}")
    g(f"s_lshl_b32 s{sT3}, s{sT1}, 5")
    g(f"s_sub_u32 s{sT2}, s{sT2}, s{sT3}")
    g(f"s_add_u32 s{sT2}, s{sT2}, {L_TOEP + 48}")
    g(f"v_add_u32 v16, s{sT2}, v16")
    g("v_mul_u32_u24 v18, 80, v6")
    g("v_lshl_add_u32 v18, v7, 4, v18")
    g(f"s_mul_i32 s{sT2}, s{sT0}, {U_CH}")
    g(f"s_add_u32 s{sT2}, s{sT2}, s{sT3}")
    g(f"s_add_u32 s{sT2}, s{sT2}, {L_U + 80}")
    g(f"v_add_u32 v18, s{sT2}, v18")
    g.wait_vm(i2)
    g.ds(f"ds_write_b128 v4, v[8:11]")
    g.ds(f"ds_write_b128 v4, v[12:15] offset:{U_CH}")
    g.wait_lg_all()
    g("s_barrier")
    g.stamp("p1 start mfma")
    DEPTH = 2
    def issue(m):
        b = vFR + 16 * (m % (DEPTH + 1))
        g.ds(f"ds_read_b128 {r(b,4)}, v16 offset:{64*m}")
        g.ds(f"ds_read_b128 {r(b+8,4)}, v18 offset:{(31-m)*80}")
        g.ds(f"ds_read_b128 {r(b+12,4)}, v18 offset:{(63-m)*80}")
        return g.ds(f"ds_read_b128 {r(b+4,4)}, v16 offset:{64*(m+32)}")
    last = {}
    for m in range(DEPTH):
        last[m] = issue(m)
    for m in range(32):
        if m + DEPTH < 32:
            last[m + DEPTH] = issue(m + DEPTH)
        g.wait_lg(last[m])
        b = vFR + 16 * (m % (DEPTH + 1))
        c0 = "0" if m == 0 else r(vACC0, 16)
        c1 = "0" if m == 0 else r(vACC1, 16)
        g(f"v_mfma_f32_32x32x16_bf16 {r(vACC0,16)}, {r(b,4)}, {r(b+8,4)}, {c0}")
        g(f"v_mfma_f32_32x32x16_bf16 {r(vACC1,16)}, {r(b,4)}, {r(b+12,4)}, {c1}")
        g(f"v_mfma_f32_32x32x16_bf16 {r(vACC1,16)}, {r(b+4,4)}, {r(b+8,4)}, {r(vACC1,16)}")
    g.stamp("p1 mfma done")
    g("s_barrier")
    g(f"v_lshlrev_b32 v4, 4, v1")
    g(f"s_lshl_b32 s{sT2}, s{sWV}, 12")
    g(f"v_add_u32 v5, s{sT2}, v4")
    g(f"s_xor_b32 s{sT2}, s{sWV}, 1")
    g(f"s_lshl_b32 s{sT2}, s{sT2}, 12")
    g(f"v_add_u32 v4, s{sT2}, v4")
    Lk1 = g.uid("L_ks1"); Lk = g.uid("L_ksj")
    g(f"s_cmp_eq_u32 s{sT1}, 0")
    g(f"s_cbranch_scc0 {Lk1}")
    g.nop(8)
    for i in range(4):
        g(f"ds_write_b128 v5, {r(vACC1+4*i,4)} offset:{1024*i}")
    g(f"s_branch {Lk}")
    g.label(Lk1)
    g.nop(8)
    for i in range(4):
        g(f"ds_write_b128 v5, {r(vACC0+4*i,4)} offset:{1024*i}")
    for i in range(16):
        g(f"v_mov_b32 v{vACC0+i}, v{vACC1+i}")
    g.label(Lk)
    g.wait_lg_all()
    g("s_barrier")
    for i in range(4):
        g.ds(f"ds_read_b128 {r(vFR+4*i,4)}, v4 offset:{1024*i}")
    g(f"s_lshl_b32 s{sT2}, s{sT1}, 7")
    g("v_lshlrev_b32 v5, 2, v6")
    g("v_add_u32 v5, v5, v7")
    g(f"v_add_u32 v5, s{sT2}, v5")
    g(f"v_mul_u32_u24 v5, {OCT}, v5")
    g(f"s_lshl_b32 s{sT2}, s{sCT}, 1")
    g(f"s_add_u32 s{sT2}, s{sT2}, s{sT0}")
    g(f"s_lshl_b32 s{sT2}, s{sT2}, 4")
    g(f"s_add_u32 s{sT2}, s{sT2}, {YT}")
    g(f"v_add_u32 v5, s{sT2}, v5")
    g(f"v_add_u32 v4, {2*OCT}, v5")
    g.wait_lg_all()
    for i in range(16):
        g(f"v_add_f32 v{vACC0+i}, v{vACC0+i}, v{vFR+i}")
    for q in range(4):
        g(f"v_cvt_pk_bf16_f32 v{vFR+2*q}, v{vACC0+4*q}, v{vACC0+4*q+1}")
        g(f"v_cvt_pk_bf16_f32 v{vFR+2*q+1}, v{vACC0+4*q+2}, v{vACC0+4*q+3}")
    g("s_nop 1")
    for b in (0, 4):
        g(f"v_permlane32_swap_b32 v{vFR+b}, v{vFR+b+2}")
        g(f"v_permlane32_swap_b32 v{vFR+b+1}, v{vFR+b+3}")
    g.vmem(f"buffer_store_dwordx4 {r(vFR,4)}, v5, {sr(sWS)}, 0 offen sc1")
    g.vmem(f"buffer_store_dwordx4 {r(vFR+4,4)}, v4, {sr(sWS)}, 0 offen sc1")
    publish(g, FLAG1, sCT)
    g.stamp("p1 published")
    g.label(Lskip)


def p2(g):
    g(f"s_lshr_b32 s{sT0}, s2, 7")
    g(f"s_mul_i32 s{sT0}, s{sT0}, {FSTR}")
    g(f"s_add_u32 s{sT0}, s{sT0}, {FLAG1}")
    g("v_min_u32 v4, 223, v0")
    g(f"v_mul_u32_u24 v2, {4*FSTR}, v4")
    g(f"v_add_u32 v2, s{sT0}, v2")
    g(f"v_add_u32 v3, {2*FSTR}, v2")
    g(f"s_mul_i32 s{sT1}, s2, {OCT}")
    g("v_lshlrev_b32 v5, 5, v0")
    g(f"v_add_u32 v5, s{sT1}, v5")
    g(f"v_mov_b32 v6, {BIG:#x}")
    g("v_cmp_gt_u32 vcc, 224, v0")
    g("s_nop 1")
    g("v_cndmask_b32 v5, v6, v5, vcc")
    poll(g, [2, 3], 8)
    g.stamp("p2 flags seen")
    g(f"s_mov_b32 s{sT2}, {YT}")
    g.vmem(f"buffer_load_dwordx4 v[8:11], v5, {sr(sWS)}, s{sT2} offen sc1")
    i2 = g.vmem(f"buffer_load_dwordx4 v[12:15], v5, {sr(sWS)}, s{sT2} offen offset:16 sc1")
    g.wait_vm(i2)
    vH = 32
    for rr in range(8):
        for c in range(2):
            (unpack_hi if rr & 1 else unpack_lo)(g, vH + 2*rr + c, 8 + 4*c + (rr >> 1))
    for rr in range(8):
        g(f"v_pk_add_f32 {r(vH+2*rr,2)}, {r(vH+2*rr,2)}, {r(vKVD+2*rr,2)}")
    for rr in range(8):
        g(f"v_pk_fma_f32 {r(vH+2*rr,2)}, {r(vQN+2*rr,2)}, {r(vH+2*rr,2)}, {r(vQF+2*rr,2)}")
    va, vb = 64, 72
    for rr in range(8):
        g(f"v_add_f32 v{va+rr}, v{vH+2*rr}, v{vH+2*rr+1}")
        g(f"v_mul_f32 v{vb+rr}, v{vH+2*rr}, v{vH+2*rr}")
        g(f"v_fmac_f32 v{vb+rr}, v{vH+2*rr+1}, v{vH+2*rr+1}")
    for rr in range(8):
        g(f"v_cvt_pk_bf16_f32 v{16+rr}, v{vH+2*rr}, v{vH+2*rr+1}")
    g(f"s_mul_i32 s{sT1}, s2, {OCT}")
    g("v_lshlrev_b32 v7, 2, v0")
    g(f"v_add_u32 v7, s{sT1}, v7")
    g("v_cmp_gt_u32 vcc, 224, v0")
    g("s_nop 1")
    g("v_cndmask_b32 v7, v6, v7, vcc")
    g(f"v_add_u32 v4, {4*896}, v7")
    g(f"s_mov_b32 s{sT2}, {HH}")
    for rr in range(8):
        if rr < 4:
            g.vmem(f"buffer_store_dword v{16+rr}, v7, {sr(sWS)}, s{sT2} offen offset:{rr*896} sc1")
        else:
            g.vmem(f"buffer_store_dword v{16+rr}, v4, {sr(sWS)}, s{sT2} offen offset:{(rr-4)*896} sc1")
    rowstats(g, va, vb, "ln2")
    for rr in range(8):
        g(f"v_pk_add_f32 {r(vH+2*rr,2)}, {r(vH+2*rr,2)}, s[{sST+2*rr}:{sST+2*rr+1}] op_sel:[0,0] op_sel_hi:[1,0] neg_lo:[0,1] neg_hi:[0,1]")
        g(f"v_pk_mul_f32 {r(vH+2*rr,2)}, {r(vH+2*rr,2)}, s[{sST+2*rr}:{sST+2*rr+1}] op_sel:[0,1] op_sel_hi:[1,1]")
    for c in range(2):
        for i in range(4):
            g(f"v_cvt_pk_bf16_f32 v{8+4*c+i}, v{vH+2*(2*i)+c}, v{vH+2*(2*i+1)+c}")
    g(f"s_mov_b32 s{sT2}, {HNT}")
    g.vmem(f"buffer_store_dwordx4 v[8:11], v5, {sr(sWS)}, s{sT2} offen sc1")
    g.vmem(f"buffer_store_dwordx4 v[12:15], v5, {sr(sWS)}, s{sT2} offen offset:16 sc1")
    publish(g, FLAG2, 2)
    g.stamp("p2 published")


vACC = 96
vXR = 160
NSLOT = 24
L_RED0 = 131072
L_RED1 = 0


def load_w(g, srd, pitch, nk, s_rowbase, s_colbase):
    g("v_lshrrev_b32 v2, 3, v1")
    g("v_and_b32 v3, 7, v1")
    g("v_lshrrev_b32 v4, 2, v1")
    g("v_and_b32 v4, 4, v4")
    g("v_xor_b32 v3, v3, v4")
    g(f"v_mul_u32_u24 v2, {pitch}, v2")
    g("v_lshl_add_u32 v2, v3, 4, v2")
    g(f"s_mul_i32 s{sT0}, s{s_rowbase}, {pitch}")
    g(f"s_add_u32 s{sT0}, s{sT0}, s{s_colbase}")
    g(f"v_add_u32 v2, s{sT0}, v2")
    g("v_lshrrev_b32 v3, 4, v1")
    g("v_bfe_u32 v4, v1, 2, 2")
    g("v_and_b32 v5, 3, v1")
    g("v_lshrrev_b32 v6, 1, v3")
    g("v_lshlrev_b32 v6, 10, v6")
    g("v_lshl_add_u32 v6, v4, 7, v6")
    g("v_and_b32 v3, 1, v3")
    g("v_lshl_add_u32 v6, v3, 5, v6")
    g("v_lshrrev_b32 v7, 1, v5")
    g("v_lshl_add_u32 v6, v7, 4, v6")
    g("v_and_b32 v7, 1, v5")
    g("v_lshl_add_u32 v6, v7, 3, v6")
    g("v_lshrrev_b32 v7, 1, v4")
    g(f"s_lshl_b32 s{sT1}, s{sWV}, 15")
    g(f"v_add_u32 v6, s{sT1}, v6")
    g("v_lshl_add_u32 v8, v7, 6, v6")
    g("v_xor_b32 v7, 1, v7")
    g("v_lshl_add_u32 v9, v7, 6, v6")
    k0 = 0
    while k0 < nk:
        kn = min(16, nk - k0)
        last = None
        for blk in range(2 * kn):
            if blk % 4 == 0:
                g(f"s_add_u32 s{sT2}, s{sT1}, {blk*1024}")
                g(f"s_mov_b32 m0, s{sT2}")
            gb = (2 * k0 + blk) * 8 * pitch - (blk % 4) * 1024
            g(f"s_mov_b32 s{sOFF}, {gb}")
            last = g.vmem(f"buffer_load_dwordx4 v2, {sr(srd)}, s{sOFF} offen offset:{(blk%4)*1024} lds")
        g.wait_vm(last)
        for kk in range(kn):
            for nt in range(2):
                for jj in range(2):
                    ab = 8 * (k0 + kk) + 4 * nt + 2 * jj
                    g.ds(f"ds_read_b64_tr_b16 {ar(ab,2)}, v{8+nt} offset:{kk*2048 + jj*512}")
        g.wait_lg_all()
        k0 += kn


def gemm(g, which):
    nk = 32 if which == 1 else 28
    Lskip = g.uid("L_nogemm")
    if which == 1:
        g(f"s_mul_i32 s{sT0}, s{sY}, 37")
        g(f"s_lshr_b32 s{sT0}, s{sT0}, 8")
        g(f"s_mul_i32 s{sT1}, s{sT0}, 7")
        g(f"s_sub_u32 s{sDT}, s{sY}, s{sT1}")
        g(f"s_lshl_b32 s{sT1}, s{sX}, 2")
        g(f"s_mul_i32 s{sT2}, s{sX}, 3")
        g(f"s_add_u32 s{sT2}, s{sT2}, 4")
        g(f"s_cmp_lt_u32 s{sX}, 4")
        g(f"s_cselect_b32 s{sT1}, s{sT1}, s{sT2}")
        g(f"s_cselect_b32 s{sT3}, 28, 21")
        g(f"s_add_u32 s{sNT}, s{sT1}, s{sT0}")
        g(f"s_cmp_ge_u32 s{sY}, s{sT3}")
        g(f"s_cbranch_scc1 {Lskip}")
    else:
        g(f"s_cmp_ge_u32 s{sY}, 28")
        g(f"s_cbranch_scc1 {Lskip}")
        g(f"s_mul_i32 s{sT0}, s{sY}, 37")
        g(f"s_lshr_b32 s{sT0}, s{sT0}, 8")
        g(f"s_mul_i32 s{sT1}, s{sT0}, 7")
        g(f"s_sub_u32 s{sDT}, s{sY}, s{sT1}")
        g(f"s_lshl_b32 s{sT1}, s{sX}, 2")
        g(f"s_add_u32 s{sNT}, s{sT1}, s{sT0}")
    g("s_barrier")
    krows = 16 * nk
    g(f"s_mul_i32 s{sT4}, s{sWV}, {krows}")
    g(f"s_lshl_b32 s{sT5}, s{sNT}, 7")
    load_w(g, sW1 if which == 1 else sW2, F * 2 if which == 1 else S * 2, nk, sT4, sT5)
    g.stamp(f"g{which} W loaded")
    if which == 1:
        g(f"s_lshl_b32 s{sT0}, s{sWV}, 6")
        g(f"v_add_u32 v2, s{sT0}, v1")
        g(f"v_mul_u32_u24 v2, {4*FSTR}, v2")
        g(f"s_lshr_b32 s{sT0}, s{sDT}, 1")
        g(f"s_mul_i32 s{sT0}, s{sT0}, {FSTR}")
        g(f"s_add_u32 s{sT0}, s{sT0}, {FLAG2}")
        g(f"v_add_u32 v2, s{sT0}, v2")
    else:
        g("v_min_u32 v3, 27, v1")
        g("v_lshrrev_b32 v2, 2, v3")
        g(f"s_mul_i32 s{sT0}, s{sWV}, 7")
        g(f"v_add_u32 v2, s{sT0}, v2")
        g("v_mul_u32_u24 v2, 7, v2")
        g(f"v_add_u32 v2, s{sDT}, v2")
        g("v_lshlrev_b32 v2, 2, v2")
        g("v_and_b32 v3, 3, v3")
        g("v_add_u32 v2, v2, v3")
        g(f"v_mul_u32_u24 v2, {FSTR}, v2")
        g(f"v_add_u32 v2, {FLAG3}, v2")
    g("v_and_b32 v6, 31, v1")
    g("v_lshrrev_b32 v7, 5, v1")
    g(f"v_mul_u32_u24 v3, {OCT}, v7")
    g("v_lshl_add_u32 v3, v6, 4, v3")
    g(f"s_mul_i32 s{sT0}, s{sWV}, {2*nk*OCT}")
    g(f"s_lshl_b32 s{sT1}, s{sDT}, 10")
    g(f"s_add_u32 s{sT0}, s{sT0}, s{sT1}")
    g(f"s_add_u32 s{sT0}, s{sT0}, {HNT if which == 1 else UT}")
    g(f"v_add_u32 v3, s{sT0}, v3")
    u_nt = sT2; u_rh = sT3
    g(f"s_lshr_b32 s{u_nt}, s{sWV}, 1")
    g(f"s_and_b32 s{u_rh}, s{sWV}, 1")
    vBI = 16
    if which == 1:
        g(f"s_lshl_b32 s{sT0}, s{sNT}, 6")
        g(f"s_lshl_b32 s{sT1}, s{u_nt}, 5")
        g(f"s_add_u32 s{sT0}, s{sT0}, s{sT1}")
        g(f"s_lshl_b32 s{sT1}, s{u_rh}, 4")
        g(f"s_add_u32 s{sT0}, s{sT0}, s{sT1}")
        g(f"s_lshl_b32 s{sT0}, s{sT0}, 1")
        g("v_lshlrev_b32 v4, 3, v7")
        g(f"v_add_u32 v4, s{sT0}, v4")
        g.vmem(f"buffer_load_dwordx2 v[10:11], v4, {sr(sB1)}, 0 offen")
        ib = g.vmem(f"buffer_load_dwordx2 v[12:13], v4, {sr(sB1)}, 0 offen offset:16")
    else:
        g(f"s_lshl_b32 s{sT0}, s{sNT}, 6")
        g(f"s_lshl_b32 s{sT1}, s{u_nt}, 5")
        g(f"s_add_u32 s{sT0}, s{sT0}, s{sT1}")
        g(f"v_add_u32 v4, s{sT0}, v6")
        g("v_lshlrev_b32 v5, 1, v4")
        ib = g.vmem(f"buffer_load_ushort v10, v5, {sr(sB2)}, 0 offen")
        g("v_mul_u32_u24 v14, 896, v4")
        g(f"s_lshl_b32 s{sT0}, s{sDT}, 7")
        g(f"s_lshl_b32 s{sT1}, s{u_rh}, 5")
        g(f"s_add_u32 s{sT0}, s{sT0}, s{sT1}")
        g(f"v_add_u32 v14, s{sT0}, v14")
        g("v_lshl_add_u32 v15, v7, 4, v14")
        g("v_lshl_add_u32 v14, v7, 3, v14")
    poll(g, [2], 8)
    g.stamp(f"g{which} flags seen")
    if which == 1:
        for i in range(4):
            (unpack_hi if i & 1 else unpack_lo)(g, vBI + i, 10 + (i >> 1))
            (unpack_hi if i & 1 else unpack_lo)(g, vBI + 4 + i, 12 + (i >> 1))
    else:
        unpack_lo(g, vBI, 10)
        g(f"s_mov_b32 s{sT0}, {HH}")
        for pp in range(2):
            for q2 in range(2):
                g.vmem(f"buffer_load_dwordx2 {r(20 + 4*pp + 2*q2, 2)}, v14, {sr(sWS)}, s{sT0} offen offset:{64*pp + 16*q2} sc1")
    seq = [(pp, k) for pp in range(2) for k in range(nk)]
    ids = {}
    def xissue(n):
        pp, k = seq[n]
        g(f"s_mov_b32 s{sOFF}, {k * 2 * OCT}")
        ids[n] = g.vmem(f"buffer_load_dwordx4 {r(vXR + 4*(n % NSLOT), 4)}, v3, {sr(sWS)}, s{sOFF} offen offset:{512*pp} sc1")
    for n in range(NSLOT):
        xissue(n)
    g("v_lshlrev_b32 v4, 4, v1")
    g(f"s_lshl_b32 s{sT0}, s{sWV}, 11")
    g(f"v_add_u32 v5, s{sT0}, v4")
    g(f"s_lshl_b32 s{sT0}, s{sWV}, 13")
    g(f"v_add_u32 v4, s{sT0}, v4")

    g(f"v_add_u32 v28, {L_RED0}, v4")
    g(f"v_add_u32 v29, {L_RED0}, v5")

    def epilogue(pp, red):
        acc = lambda nt: vACC + 32*pp + 16*nt
        vr, vw = (28, 29) if pp == 0 else (4, 5)
        red = 0
        g.nop(12)
        for u in range(4):
            nt, rh = u >> 1, u & 1
            for hf in range(2):
                g.ds(f"ds_write_b128 v{vw}, {r(acc(nt) + 8*rh + 4*hf, 4)} offset:{red + u*8192 + hf*1024}")
        g.wait_lg_all()
        g("s_barrier")
        T = 32
        for src in range(4):
            for hf in range(2):
                g.ds(f"ds_read_b128 {r(T + 8*src + 4*hf, 4)}, v{vr} offset:{red + src*2048 + hf*1024}")
        g.wait_lg_all()
        for i in range(0, 8, 2):
            g(f"v_pk_add_f32 {r(T+i,2)}, {r(T+i,2)}, {r(T+8+i,2)}")
            g(f"v_pk_add_f32 {r(T+16+i,2)}, {r(T+16+i,2)}, {r(T+24+i,2)}")
        for i in range(0, 8, 2):
            g(f"v_pk_add_f32 {r(T+i,2)}, {r(T+i,2)}, {r(T+16+i,2)}")
        if which == 1:
            for i in range(0, 8, 2):
                g(f"v_pk_add_f32 {r(T+i,2)}, {r(T+i,2)}, {r(vBI+i,2)}")
            U = T + 8
            g(f"s_mov_b32 s{sC1}, 0xc0135761")
            g(f"s_mov_b32 s{sC2}, 0xbdd2d3e8")
            g(f"v_mov_b32 v{T+16}, s{sC1}")
            for i in range(8):
                g(f"v_mul_f32 v{U+i}, v{T+i}, v{T+i}")
            for i in range(8):
                g(f"v_fma_f32 v{U+i}, v{U+i}, s{sC2}, v{T+16}")
            for i in range(8):
                g(f"v_mul_f32 v{U+i}, v{U+i}, v{T+i}")
            for i in range(8):
                g(f"v_exp_f32 v{U+i}, v{U+i}")
            for i in range(8):
                g(f"v_add_f32 v{U+i}, 1.0, v{U+i}")
            for i in range(8):
                g(f"v_rcp_f32 v{U+i}, v{U+i}")
            for i in range(8):
                g(f"v_mul_f32 v{T+i}, v{T+i}, v{U+i}")
        else:
            for i in range(8):
                g(f"v_add_f32 v{T+i}, v{T+i}, v{vBI}")
            U = T + 8
            for q2 in range(2):
                for i in range(2):
                    unpack_lo(g, U + 4*q2 + 2*i, 20 + 4*pp + 2*q2 + i)
                    unpack_hi(g, U + 4*q2 + 2*i + 1, 20 + 4*pp + 2*q2 + i)
            for i in range(0, 8, 2):
                g(f"v_pk_add_f32 {r(T+i,2)}, {r(T+i,2)}, {r(U+i,2)}")
        P = T + 16
        for i in range(4):
            g(f"v_cvt_pk_bf16_f32 v{P+i}, v{T+2*i}, v{T+2*i+1}")
        g("s_nop 1")
        g(f"v_permlane32_swap_b32 v{P}, v{P+2}")
        g(f"v_permlane32_swap_b32 v{P+1}, v{P+3}")
        if which == 1:
            g.vmem(f"buffer_store_dwordx4 {r(P,4)}, v14, {sr(sWS)}, 0 offen offset:{512*pp} sc1")
        else:
            g.vmem(f"buffer_store_dwordx4 {r(P,4)}, v15, {sr(sOUT)}, 0 offen offset:{64*pp}")

    if which == 1:
        g(f"s_lshl_b32 s{sT0}, s{sNT}, 3")
        g(f"s_lshl_b32 s{sT1}, s{u_nt}, 2")
        g(f"s_add_u32 s{sT0}, s{sT0}, s{sT1}")
        g(f"s_lshl_b32 s{sT1}, s{u_rh}, 1")
        g(f"s_add_u32 s{sT0}, s{sT0}, s{sT1}")
        g(f"v_add_u32 v14, s{sT0}, v7")
        g(f"v_mul_u32_u24 v14, {OCT}, v14")
        g("v_lshl_add_u32 v14, v6, 4, v14")
        g(f"s_lshl_b32 s{sT0}, s{sDT}, 10")
        g(f"s_add_u32 s{sT0}, s{sT0}, {UT}")
        g(f"v_add_u32 v14, s{sT0}, v14")

    n = 0
    for pp in range(2):
        for k in range(nk):
            g.wait_vm(ids[n])
            x = r(vXR + 4*(n % NSLOT), 4)
            for nt in range(2):
                acc = r(vACC + 32*pp + 16*nt, 16)
                c = "0" if k == 0 else acc
                w = ar(8*k + 4*nt, 4)
                if which == 1:
                    g(f"v_mfma_f32_32x32x16_bf16 {acc}, {w}, {x}, {c}")
                else:
                    g(f"v_mfma_f32_32x32x16_bf16 {acc}, {x}, {w}, {c}")
            if n + NSLOT < len(seq):
                xissue(n + NSLOT)
            n += 1
        g.stamp(f"g{which} pass {pp} mfma done")
        epilogue(pp, L_RED0 if pp == 0 else L_RED1)
    if which == 1:
        g(f"s_mul_i32 s{sT4}, s{sNT}, 7")
        g(f"s_add_u32 s{sT4}, s{sT4}, s{sDT}")
        publish(g, FLAG3, sT4)
    g.stamp(f"g{which} done")
    g.label(Lskip)


def finish(g):
    g("s_cmp_eq_u32 s2, 0")
    g("s_cbranch_scc0 L_exit")
    g(f"s_cmp_eq_u32 s{sWV}, 0")
    g("s_cbranch_scc0 L_exit")
    g("v_mov_b32 v2, 0")
    g(f"v_mov_b32 v3, s{sNONCE}")
    g("s_mov_b64 exec, 1")
    g(f"buffer_store_dword v3, v2, {sr(sWS)}, 0 offen sc1")


def build(profile=False, stop_after=9):
    g = G(profile)
    g(f"; @launch grid=({NWG},1,1) block=(256,1,1) lds={LDS_BYTES}")
    g('.amdgcn_target "amdgcn-amd-amdhsa--gfx950"')
    g(".text")
    g(f".globl {KNAME}")
    g(".p2align 8")
    g(f".type {KNAME},@function")
    g(f"{KNAME}:")
    prologue(g)
    g.stamp("start")
    p0(g)
    slot_a(g)
    if stop_after >= 1: p1(g)
    if stop_after >= 2: p2(g)
    if stop_after >= 3: gemm(g, 1)
    if stop_after >= 4: gemm(g, 2)
    finish(g)
    g("L_exit:")
    g("s_endpgm")
    g('.section .rodata,"a"')
    g(".p2align 6")
    g(f".amdhsa_kernel {KNAME}")
    g("  .amdhsa_next_free_vgpr 512")
    g("  .amdhsa_next_free_sgpr 102")
    g("  .amdhsa_accum_offset 256")
    g("  .amdhsa_group_segment_fixed_size 0")
    g("  .amdhsa_kernarg_size 112")
    g("  .amdhsa_user_sgpr_count 2")
    g("  .amdhsa_user_sgpr_kernarg_segment_ptr 1")
    g("  .amdhsa_system_sgpr_workgroup_id_x 1")
    g("  .amdhsa_float_denorm_mode_32 3")
    g(".end_amdhsa_kernel")
    return g


if __name__ == "__main__":
    import struct
    g = build(profile="--prof" in sys.argv)
    out = [a for a in sys.argv[1:] if not a.startswith("--")]
    txt = g.text()
    if out:
        open(out[0], "w").write(txt)
    else:
        sys.stdout.write(txt)
```

```python
import sys
from asmlib import A, KNAME

S, D, F = 2048, 448, 1792
NWG = 256
BIG = 0x80000000

EPOCH = 0
FLAG0, FLAG1, FLAG2, FLAG3 = 0x10000, 0x20000, 0x30000, 0x40000
FSTR = 64
KVT, YT, HNT, HH, UT = 0x100000, 0x400000, 0x700000, 0x900000, 0xB00000
PROF = 0xD00000
KSLAB = 3 * 3584
YSLAB = 3 * 4096
WS_BYTES = 0x1000000
OCT = D * 16
PLANE = OCT // 2

sQ, sK, sV, sSK, sSS, sDD, sW1, sB1, sW2, sB2, sOUT, sWS = 4, 8, 12, 16, 20, 24, 28, 32, 36, 40, 44, 48
sWV, sNONCE, sBUD, sX, sY, sCT, sDT, sFT = 52, 53, 54, 55, 56, 57, 58, 59
sT0, sT1, sT2, sT3, sT4, sT5 = 60, 61, 62, 63, 64, 65
sMASK = 66
sJ = 67
sST = 68
sEX = 84
sP0, sP1 = 86, 88
sC1, sC2 = 90, 91
sOFF = 92
sSTL = 93
sR1 = 94
sM0 = 95
sWB = 96
sRA = 97

L_TOEP = 0
TOEP_P = 4416
TOEP_CH = 4 * TOEP_P
L_U = 2 * TOEP_CH
U_CH = 7680
L_STATS = 163328
L_RED = 131072
L_RA = 51200
KA = 8
RA_W = KA * 2048
LDS_BYTES = 163840

OPT = dict(pf1=2, pf2=1, dma_step=2, drain_dma=4, mall1=0, mall2=0, ka=8, pf_at=0, drain_dma3=0, gap=3, dma_lead=0, dma_from=0, nslot=10, xpos=1, qpos=2, early=2, nt0=3)


class G(A):
    def __init__(self, profile=False):
        super().__init__()
        self.vm = 0
        self.lg = 0
        self.profile = profile
        self.nstamp = 0
        self.sreg = (152, 154)
        self.pending = []
    def slot(self, n=1):
        for _ in range(n):
            if self.pending:
                self.pending.pop(0)()
    def flush(self):
        self.slot(len(self.pending))
    def record(self, fns, ids=None):
        keep, vm, lg = self.lines, self.vm, self.lg
        self.lines = []
        for f in fns: f()
        lines, self.lines, self.vm, self.lg = self.lines, keep, vm, lg
        ops = []
        for l in lines:
            if l.startswith("ds_"):
                ops.append((3 if "write_b128" in l else 1, lambda l=l: self.ds(l)))
            elif l.startswith("buffer_"):
                ops.append((2, lambda l=l: (ids.append(self.vmem(l)) if ids is not None else self.vmem(l))))
            elif l.startswith(("v_exp", "v_rcp", "v_rsq")):
                ops.append((2, lambda l=l: self(l)))
            else:
                ops.append((1, lambda l=l: self(l)))
        return ops
    def gap(self, ops, budget):
        while ops and budget > 0:
            c, f = ops[0]
            if c > budget and budget < 3: break
            ops.pop(0); f(); budget -= c
    def vmem(self, s):
        self(s); self.vm += 1
        return self.vm
    def wait_vm(self, opid):
        n = self.vm - opid
        assert 0 <= n
        self(f"s_waitcnt vmcnt({min(n, 63)})")
    def wait_vm_all(self):
        self("s_waitcnt vmcnt(0)")
    def ds(self, s):
        self(s); self.lg += 1
        return self.lg
    def wait_lg(self, opid):
        n = self.lg - opid
        assert n >= 0
        self(f"s_waitcnt lgkmcnt({min(n, 15)})")
    def wait_lg_all(self):
        self("s_waitcnt lgkmcnt(0)")
    def nop(self, n):
        while n > 0:
            k = min(n, 16)
            self(f"s_nop {k-1}")
            n -= k
    def stamp(self, name):
        if not self.profile:
            return
        if self.profile == "lite" and name not in ("start", "end"):
            return
        i = self.nstamp; self.nstamp += 1
        a, b = self.sreg
        self(f"s_memrealtime s[{sP0}:{sP0+1}]")
        self(f"s_memtime s[{sP1}:{sP1+1}]")
        self("s_waitcnt lgkmcnt(0)")
        self(f"v_mov_b32 v{a}, s{sP0}")
        self(f"v_mov_b32 v{a+1}, s{sP1}")
        self(f"s_lshl_b32 s{sP1}, s2, 2")
        self(f"s_add_u32 s{sP1}, s{sP1}, s{sWV}")
        self(f"s_lshl_b32 s{sP1}, s{sP1}, 8")
        self(f"s_add_u32 s{sP1}, s{sP1}, {PROF + 8*i}")
        self(f"v_mov_b32 v{b}, s{sP1}")
        self(f"s_mov_b64 s[{sP0}:{sP0+1}], exec")
        self("s_mov_b64 exec, 1")
        self.vmem(f"buffer_store_dwordx2 v[{a}:{a+1}], v{b}, s[{sWS}:{sWS+3}], 0 offen")
        self(f"s_mov_b64 exec, s[{sP0}:{sP0+1}]")


def r(base, n):
    return f"v[{base}:{base+n-1}]"
def ar(base, n):
    return f"a[{base}:{base+n-1}]"
def sr(base, n=4):
    return f"s[{base}:{base+n-1}]"


def prologue(g):
    g(f"s_cmp_ge_u32 s2, {NWG}")
    g("s_cbranch_scc1 L_exit")
    for sreg, off in ((sK, 8), (sV, 16), (sSK, 24), (sWS, 104), (sSS, 32), (sQ, 0), (sDD, 40), (sW1, 56), (sB1, 64),
                      (sW2, 72), (sB2, 80), (sOUT, 88)):
        g(f"s_load_dwordx2 s[{sreg}:{sreg+1}], s[0:1], {off}")
    for sreg, nb in ((sQ, S*D*2), (sK, S*D*2), (sV, S*D*2), (sSK, D*8), (sSS, D*S*2), (sDD, D*2), (sW1, S*F*2),
                     (sB1, F*2), (sW2, S*F*2), (sB2, S*2), (sOUT, S*D*2), (sWS, WS_BYTES)):
        g(f"s_mov_b32 s{sreg+2}, {nb:#x}")
        g(f"s_mov_b32 s{sreg+3}, 0x20000")
    g("v_lshrrev_b32 v2, 6, v0")
    g("v_and_b32 v1, 63, v0")
    g(f"v_readfirstlane_b32 s{sWV}, v2")
    g(f"s_mov_b32 s{sMASK}, 0xffff0000")
    g(f"s_mov_b32 s{sBUD}, 0x40000")
    g(f"s_and_b32 s{sX}, s2, 7")
    g(f"s_lshr_b32 s{sY}, s2, 3")
    g(f"s_mul_i32 s{sCT}, s{sX}, 28")
    g(f"s_add_u32 s{sCT}, s{sCT}, s{sY}")
    g(f"s_lshl_b32 s{sJ}, s{sX}, 5")
    g(f"s_add_u32 s{sJ}, s{sJ}, s{sY}")
    g(f"s_mul_i32 s{sT0}, s{sY}, 37")
    g(f"s_lshr_b32 s{sT0}, s{sT0}, 8")
    g(f"s_mul_i32 s{sT1}, s{sT0}, 7")
    g(f"s_sub_u32 s{sDT}, s{sY}, s{sT1}")
    g(f"s_lshl_b32 s{sT1}, s{sX}, 2")
    g(f"s_add_u32 s{sSTL}, s{sT1}, s{sT0}")
    g(f"s_mul_i32 s{sT2}, s{sX}, 3")
    g(f"s_add_u32 s{sT2}, s{sT2}, 4")
    g(f"s_cmp_lt_u32 s{sX}, 4")
    g(f"s_cselect_b32 s{sT1}, s{sT1}, s{sT2}")
    g(f"s_cselect_b32 s{sT3}, 28, 21")
    g(f"s_cselect_b32 s{sT2}, 3, 2")
    g(f"s_min_u32 s{sT2}, s{sT2}, s{sT0}")
    g(f"s_add_u32 s{sFT}, s{sT1}, s{sT2}")
    g(f"s_cmp_lt_u32 s{sY}, s{sT3}")
    g(f"s_cselect_b32 s{sR1}, 1, 0")
    g(f"s_lshl_b32 s{sWB}, s{sWV}, 15")
    g(f"s_mul_i32 s{sRA}, s{sWV}, {RA_W}")
    g(f"s_add_u32 s{sRA}, s{sRA}, {L_RA}")
    g("s_waitcnt lgkmcnt(0)")


def unpack_lo(g, dst, src): g(f"v_lshlrev_b32 v{dst}, 16, v{src}")
def unpack_hi(g, dst, src): g(f"v_and_b32 v{dst}, s{sMASK}, v{src}")


def flag_store(g, flagbase, s_index):
    g(f"s_lshl_b32 s{sT0}, s{s_index}, 2")
    g(f"s_add_u32 s{sT0}, s{sT0}, s{sWV}")
    g(f"s_mul_i32 s{sT0}, s{sT0}, {FSTR}")
    g(f"s_add_u32 s{sT0}, s{sT0}, {flagbase}")
    g(f"v_mov_b32 v2, s{sT0}")
    g(f"v_mov_b32 v3, s{sNONCE}")
    g(f"s_mov_b64 s[{sEX}:{sEX+1}], exec")
    g("s_mov_b64 exec, 1")
    g.vmem(f"buffer_store_dword v3, v2, {sr(sWS)}, 0 offen sc1")
    g(f"s_mov_b64 exec, s[{sEX}:{sEX+1}]")


def poll(g, vaddrs, vtmp):
    L = g.uid("L_poll"); Lok = g.uid("L_pollok")
    g.label(L)
    for i, va in enumerate(vaddrs):
        g(f"buffer_load_dword v{vtmp+i}, v{va}, {sr(sWS)}, 0 offen sc1")
    g("s_waitcnt vmcnt(0)")
    g(f"v_cmp_ne_u32 vcc, s{sNONCE}, v{vtmp}")
    for i in range(1, len(vaddrs)):
        g(f"v_cmp_ne_u32 s[{sEX}:{sEX+1}], s{sNONCE}, v{vtmp+i}")
        g("s_nop 1")
        g(f"s_or_b64 vcc, vcc, s[{sEX}:{sEX+1}]")
    g("s_nop 1")
    g(f"s_cbranch_vccz {Lok}")
    g(f"s_sub_u32 s{sBUD}, s{sBUD}, 1")
    g(f"s_cmp_gt_i32 s{sBUD}, 0")
    g(f"s_cbranch_scc1 {L}")
    g.label(Lok)


def gather_tagged(g, vaddr, soffs, imms, dst):
    L = g.uid("L_gath"); Lok = g.uid("L_gathok")
    g.label(L)
    for q in range(3):
        g(f"buffer_load_dwordx4 {r(dst + 4*q, 4)}, v{vaddr}, {sr(sWS)}, {soffs[q]} offen offset:{imms[q]} sc1")
    g("s_waitcnt vmcnt(0)")
    g(f"v_xor_b32 v{dst+3}, s{sNONCE}, v{dst+3}")
    g(f"v_xor_b32 v{dst+7}, s{sNONCE}, v{dst+7}")
    g(f"v_xor_b32 v{dst+11}, s{sNONCE}, v{dst+11}")
    g(f"v_or3_b32 v{dst+3}, v{dst+3}, v{dst+7}, v{dst+11}")
    g(f"v_cmp_ne_u32 vcc, 0, v{dst+3}")
    g("s_nop 1")
    g(f"s_cbranch_vccz {Lok}")
    g(f"s_sub_u32 s{sBUD}, s{sBUD}, 1")
    g(f"s_cmp_gt_i32 s{sBUD}, 0")
    g(f"s_cbranch_scc1 {L}")
    g.label(Lok)


vTR0, vTR1, vWS = 24, 25, 26

def w_params(which):
    return (sW1, F*2, 32, sFT) if which == 1 else (sW2, S*2, 28, sSTL)

def w_src(g, which):
    srd, pitch, nk, stile = w_params(which)
    g(f"v_lshrrev_b32 v{vWS}, 3, v1")
    g("v_and_b32 v30, 7, v1")
    g("v_lshrrev_b32 v31, 2, v1")
    g("v_and_b32 v31, 4, v31")
    g("v_xor_b32 v30, v30, v31")
    g(f"v_mul_u32_u24 v{vWS}, {pitch}, v{vWS}")
    g(f"v_lshl_add_u32 v{vWS}, v30, 4, v{vWS}")
    g(f"s_mul_i32 s{sT0}, s{sWV}, {16*nk*pitch}")
    g(f"s_lshl_b32 s{sT1}, s{stile}, 7")
    g(f"s_add_u32 s{sT0}, s{sT0}, s{sT1}")
    g(f"v_add_u32 v{vWS}, s{sT0}, v{vWS}")

def w_dma_block(g, which, kstep, half, slot, sbase=None, first=False):
    srd, pitch, nk, stile = w_params(which)
    sbase = sWB if sbase is None else sbase
    lds = slot*2048 + half*1024
    goff = (2*kstep + half)*8*pitch
    base = (lds // 4096) * 4096
    if goff < lds - base:
        base = lds
    key = (sbase, base)
    if first or getattr(g, "m0key", None) != key:
        g(f"s_add_u32 s{sM0}, s{sbase}, {base}")
        g(f"s_mov_b32 m0, s{sM0}")
        g.m0key = key
    imm = lds - base
    g(f"s_mov_b32 s{sOFF}, {goff - imm}")
    ntw = " nt" if OPT["nt0"] & 4 else ""
    return g.vmem(f"buffer_load_dwordx4 v{vWS}, {sr(srd)}, s{sOFF} offen offset:{imm}{ntw} lds")

def w_dma(g, which, k0, kn, slot0, sbase=None):
    last = None
    g.m0key = None
    for kk in range(kn):
        for half in range(2):
            last = w_dma_block(g, which, k0 + kk, half, slot0 + kk, sbase)
    return last

def tr_addr(g):
    g("v_lshrrev_b32 v3, 4, v1")
    g("v_bfe_u32 v4, v1, 2, 2")
    g("v_and_b32 v5, 3, v1")
    g("v_lshrrev_b32 v6, 1, v3")
    g("v_lshlrev_b32 v6, 10, v6")
    g("v_lshl_add_u32 v6, v4, 7, v6")
    g("v_and_b32 v3, 1, v3")
    g("v_lshl_add_u32 v6, v3, 5, v6")
    g("v_lshrrev_b32 v7, 1, v5")
    g("v_lshl_add_u32 v6, v7, 4, v6")
    g("v_and_b32 v7, 1, v5")
    g("v_lshl_add_u32 v6, v7, 3, v6")
    g("v_lshrrev_b32 v7, 1, v4")
    g(f"v_add_u32 v6, s{sWB}, v6")
    g(f"v_lshl_add_u32 v{vTR0}, v7, 6, v6")
    g("v_xor_b32 v7, 1, v7")
    g(f"v_lshl_add_u32 v{vTR1}, v7, 6, v6")

def w_tr(g, k0, kn, slot0=0, va=None):
    va = vTR0 if va is None else va
    for kk in range(kn):
        for nt in range(2):
            for jj in range(2):
                ab = 8*(k0 + kk) + 4*nt + 2*jj
                g.ds(f"ds_read_b64_tr_b16 {ar(ab,2)}, v{va+nt} offset:{(slot0 + kk)*2048 + jj*512}")


def l2_prefetch(g, which):
    srd, pitch = (sW1, F*2) if which == 1 else (sW2, S*2)
    rows = (S if which == 1 else F) // 16
    L = g.uid("L_nopf")
    g(f"s_cmp_lt_u32 s{sY}, 28")
    g(f"s_cbranch_scc1 {L}")
    if which == 1:
        g(f"s_lshl_b32 s{sT1}, s{sX}, 2")
        g(f"s_mul_i32 s{sT2}, s{sX}, 3")
        g(f"s_add_u32 s{sT2}, s{sT2}, 4")
        g(f"s_cmp_lt_u32 s{sX}, 4")
        g(f"s_cselect_b32 s{sT1}, s{sT1}, s{sT2}")
        g(f"s_lshl_b32 s{sT1}, s{sT1}, 7")
    else:
        g(f"s_lshl_b32 s{sT1}, s{sX}, 9")
    g(f"s_sub_u32 s{sT0}, s{sY}, 28")
    g(f"s_lshl_b32 s{sT0}, s{sT0}, 2")
    g(f"s_add_u32 s{sT0}, s{sT0}, s{sWV}")
    g(f"s_mul_i32 s{sT0}, s{sT0}, {rows*pitch}")
    g(f"s_add_u32 s{sT0}, s{sT0}, s{sT1}")
    g("v_lshrrev_b32 v2, 5, v1")
    g(f"v_mul_u32_u24 v2, {pitch}, v2")
    g("v_and_b32 v3, 31, v1")
    g("v_lshl_add_u32 v2, v3, 4, v2")
    g(f"v_add_u32 v2, s{sT0}, v2")
    for i in range(rows // 2):
        g(f"s_mov_b32 s{sOFF}, {2*i*pitch}")
        g(f"buffer_load_dwordx4 {ar(4*(i % 16), 4)}, v2, {sr(srd)}, s{sOFF} offen" + (" nt" if OPT["nt0"] & 8 else ""))
    g.label(L)


def mall_head(g):
    nrow = 16 * KA
    per_q = nrow * F * 2
    n = -(-per_q * 4 // (1024 * 1024))
    share = n * 1024
    wpq = -(-per_q // share)
    g(f"s_lshl_b32 s{sT0}, s2, 2")
    g(f"s_add_u32 s{sT0}, s{sT0}, s{sWV}")
    g(f"s_lshr_b32 s{sT1}, s{sT0}, 8")
    g(f"s_and_b32 s{sT0}, s{sT0}, 255")
    g(f"s_mul_i32 s{sT0}, s{sT0}, {share}")
    g(f"s_mul_i32 s{sT1}, s{sT1}, {512*F*2}")
    g(f"s_add_u32 s{sT0}, s{sT0}, s{sT1}")
    g(f"v_lshlrev_b32 v43, 4, v1")
    g(f"v_add_u32 v43, s{sT0}, v43")
    for i in range(n):
        g.vmem(f"buffer_load_dwordx4 {ar(224 + 4*i, 4)}, v43, {sr(sW1)}, 0 offen offset:{1024*i}")


def mall_prefetch(g, which, pieces=False, conv=False):
    va = 43 if which == 2 else 19
    srd = sW1 if which == 1 else sW2
    if which == 1 and not conv:
        n = 7
        g(f"s_lshl_b32 s{sT0}, s2, 2")
    else:
        n = 8
        g(f"s_lshl_b32 s{sT0}, s{sCT}, 2")
    g(f"s_add_u32 s{sT0}, s{sT0}, s{sWV}")
    g(f"s_mul_i32 s{sT0}, s{sT0}, {n*1024}")
    g(f"v_lshlrev_b32 v{va}, 4, v1")
    g(f"v_add_u32 v{va}, s{sT0}, v{va}")
    def one(i):
        def f():
            if i < 4:
                g.vmem(f"buffer_load_dwordx4 {ar(224 + 4*i, 4)}, v{va}, {sr(srd)}, 0 offen offset:{1024*i}")
            else:
                g(f"s_mov_b32 s{sOFF}, 4096")
                g.vmem(f"buffer_load_dwordx4 {ar(224 + 4*i, 4)}, v{va}, {sr(srd)}, s{sOFF} offen offset:{1024*(i-4)}")
        return f
    P = [one(i) for i in range(n)]
    if pieces:
        return P
    for f in P: f()


vKR, vVR, vQR, vSKR, vDR, vEP = 8, 20, 28, 36, 40, 41
vSW0, vSW1, vSWX = 44, 52, 60
vKF, vSKP = 68, 90
vKVF = 98
vKVP = 160
vQK = 232
vDK = 42
vTMP = 124
vSA = 156
vQF, vQN, vKVD = 176, 192, 208


def kvreg(c, i):
    return vKVP + 4*c + i if i < 3 else vKVP + 8 + c


def p0(g):
    g(f"s_mul_i32 s{sT0}, s{sJ}, {OCT}")
    g("v_lshlrev_b32 v2, 2, v0")
    g(f"v_add_u32 v3, s{sT0}, v2")
    g(f"v_mov_b32 v4, {BIG:#x}")
    g(f"v_cmp_gt_u32 vcc, 224, v0")
    g("v_lshlrev_b32 v7, 4, v0")
    g("s_nop 0")
    g("v_cndmask_b32 v3, v4, v3, vcc")
    g(f"v_add_u32 v5, {5*896}, v3")
    g(f"v_subrev_u32 v6, {3*896}, v3")
    g(f"s_cmp_eq_u32 s{sJ}, 0")
    g(f"s_cselect_b32 s{sT1}, 1, 0")
    g(f"v_mov_b32 v19, s{sT1}")
    g("v_cmp_eq_u32 vcc, 1, v19")
    g("v_mov_b32 v19, 0")
    g("s_nop 0")
    g("v_cndmask_b32 v6, v6, v4, vcc")
    nt = " nt" if OPT["nt0"] & 1 else ""
    nts = " nt" if OPT["nt0"] & 2 else ""
    def rowload(dst, srd, rr):
        if rr < 0:
            return g.vmem(f"buffer_load_dword v{dst}, v6, {sr(srd)}, 0 offen offset:{(rr+3)*896}{nt}")
        if rr < 5:
            return g.vmem(f"buffer_load_dword v{dst}, v3, {sr(srd)}, 0 offen offset:{rr*896}{nt}")
        return g.vmem(f"buffer_load_dword v{dst}, v5, {sr(srd)}, 0 offen offset:{(rr-5)*896}{nt}")
    for rr in range(-3, 8):
        rowload(vKR + rr + 3, sK, rr)
    for rr in range(8):
        rowload(vVR + rr, sV, rr)
    g.vmem(f"buffer_load_dwordx4 {r(vSKR,4)}, v7, {sr(sSK)}, 0 offen")
    iv = g.vmem(f"buffer_load_dword v{vEP}, v19, {sr(sWS)}, 0 offen sc1")
    if OPT["mall1"] == 1:
        mall_prefetch(g, 1)
    if OPT["mall1"] == 3:
        mall_head(g)
    g(f"s_lshl_b32 s{sT0}, s{sCT}, 13")
    g(f"v_add_u32 v{vSA}, s{sT0}, v7")
    g(f"v_subrev_u32 v{vSA+1}, 64, v{vSA}")
    g(f"v_subrev_u32 v{vSA+2}, 48, v{vSA}")
    g("v_cmp_le_u32 vcc, 4, v0")
    g(f"s_mov_b32 s{sC1}, 4096")
    g("s_nop 0")
    g(f"v_cndmask_b32 v{vSA+1}, v4, v{vSA+1}, vcc")
    g("v_cmp_le_u32 vcc, 3, v0")
    g("s_nop 1")
    g(f"v_cndmask_b32 v{vSA+2}, v4, v{vSA+2}, vcc")
    g("v_cmp_le_u32 vcc, 4, v1")
    g("v_mov_b32 v7, 0")
    g(f"v_mov_b32 v{vSA+3}, {4096 - 64}")
    g(f"v_cndmask_b32 v7, v7, v{vSA+3}, vcc")
    g(f"v_lshlrev_b32 v{vSA+3}, 4, v1")
    g(f"v_add3_u32 v7, v7, v{vSA+3}, s{sT0}")
    g(f"v_add_u32 v7, {16*256 - 64}, v7")
    g("v_cmp_gt_u32 vcc, 8, v1")
    g("s_nop 1")
    g(f"v_cndmask_b32 v{vSA+3}, v4, v7, vcc")
    def late_loads():
        g.vmem(f"buffer_load_dwordx4 {r(vSW0,4)}, v{vSA+1}, {sr(sSS)}, 0 offen{nts}")
        g.vmem(f"buffer_load_dwordx4 {r(vSW0+4,4)}, v{vSA+2}, {sr(sSS)}, 0 offen{nts}")
        g.vmem(f"buffer_load_dwordx4 {r(vSW1,4)}, v{vSA+1}, {sr(sSS)}, s{sC1} offen{nts}")
        g.vmem(f"buffer_load_dwordx4 {r(vSW1+4,4)}, v{vSA+2}, {sr(sSS)}, s{sC1} offen{nts}")
        g.vmem(f"buffer_load_dwordx4 {r(vSWX,4)}, v{vSA+3}, {sr(sSS)}, 0 offen{nts}")
        g.ssm_id = g.vmem(f"buffer_load_dwordx4 {r(vSWX+4,4)}, v{vSA+3}, {sr(sSS)}, 0 offen offset:16{nts}")
        for rr in range(8):
            rowload(vQK + rr, sQ, rr)
        g.q_id = g.vmem(f"buffer_load_dword v{vDK}, v2, {sr(sDD)}, 0 offen")

    if OPT["early"] == 1:
        late_loads()
    g.stamp("p0 loads issued")
    g.wait_vm(iv)
    g.stamp("p0 k,v landed")
    g(f"v_readfirstlane_b32 s{sNONCE}, v{vEP}")
    late_ops = []
    if OPT["early"] == 2:
        ids_ = []
        late_ops = g.record([late_loads], ids_)
        n_ssm = 6
        def fix_ids():
            g.ssm_id = ids_[5]; g.q_id = ids_[-1]
    for j in range(4):
        src0 = vSKR + (j >> 1); src1 = vSKR + 2 + (j >> 1)
        (unpack_hi if j & 1 else unpack_lo)(g, vSKP + 2*j, src0)
        (unpack_hi if j & 1 else unpack_lo)(g, vSKP + 2*j + 1, src1)
    g(f"s_add_u32 s{sNONCE}, s{sNONCE}, 0x9e3779b9")
    for i in range(11):
        unpack_lo(g, vKF + 2*i, vKR + i)
        unpack_hi(g, vKF + 2*i + 1, vKR + i)
        if i % 2 == 1: g.gap(late_ops, 2)
    for rr in range(8):
        g.gap(late_ops, 2)
        d = vKVF + 2*rr
        kf = lambda q: vKF + 2*(q + 3)
        g(f"v_pk_mul_f32 {r(d,2)}, {r(kf(rr),2)}, {r(vSKP,2)}")
        for j in (1, 2, 3):
            g(f"v_pk_fma_f32 {r(d,2)}, {r(kf(rr-j),2)}, {r(vSKP+2*j,2)}, {r(d,2)}")
        unpack_lo(g, vTMP, vVR + rr)
        unpack_hi(g, vTMP + 1, vVR + rr)
        g(f"v_pk_mul_f32 {r(d,2)}, {r(d,2)}, {r(vTMP,2)}")
    for c in range(2):
        for i in range(4):
            g(f"v_cvt_pk_bf16_f32 v{kvreg(c, i)}, v{vKVF + 2*(7-2*i) + c}, v{vKVF + 2*(6-2*i) + c}")
    for gq in range(3):
        g(f"v_mov_b32 v{vKVP + 4*gq + 3}, s{sNONCE}")
    g(f"v_mov_b32 v{vKVP + 10}, 0")
    g(f"s_mul_i32 s{sT0}, s{sJ}, {KSLAB}")
    g(f"s_add_u32 s{sT0}, s{sT0}, {KVT}")
    g("v_lshlrev_b32 v7, 4, v0")
    g(f"v_add_u32 v7, s{sT0}, v7")
    g("v_cmp_gt_u32 vcc, 224, v0")
    g(f"s_mov_b32 s{sT0}, {2*PLANE}")
    g("s_nop 0")
    g("v_cndmask_b32 v7, v4, v7, vcc")
    g.vmem(f"buffer_store_dwordx4 {r(vKVP,4)}, v7, {sr(sWS)}, 0 offen sc1")
    g.vmem(f"buffer_store_dwordx4 {r(vKVP+4,4)}, v7, {sr(sWS)}, 0 offen offset:{PLANE} sc1")
    ist = g.vmem(f"buffer_store_dwordx4 {r(vKVP+8,4)}, v7, {sr(sWS)}, s{sT0} offen sc1")
    g.stamp("p0 stores issued")
    if g.profile is True: ist = g.vm
    if OPT["early"] == 0:
        late_loads()
    g.gap(late_ops, 1000)
    if OPT["early"] == 2:
        fix_ids()
    if OPT["mall1"] == 2:
        mall_prefetch(g, 1)
    g.stamp("p0 published")


def toeplitz_pass(g, w, vaddr, ch_off):
    XE, XO, WO = 128, 132, 136
    for i in range(4):
        g(f"v_alignbit_b32 v{XE+i}, v{w+i+1}, v{w+i}, 16")
    for i in range(4):
        g(f"v_alignbit_b32 v{XO+i}, v{w+i+2}, v{w+i+1}, 16")
    for i in range(4):
        g(f"v_mov_b32 v{WO+i}, v{w+i+1}")
    src = {0: XE, 2: XO, 3: w+2, 1: WO}
    for p in (3, 0, 2, 1):
        g.ds(f"ds_write_b128 v{vaddr}, {r(src[p],4)} offset:{ch_off + p*TOEP_P}")


def rowstats(g, va, vb, mode):
    LS = L_STATS + (256 if mode == "ln2" else 0)
    for i in range(8):
        g(f"v_permlane32_swap_b32 v{va+i}, v{vb+i}")
    g.slot()
    for i in range(8):
        g(f"v_add_f32 v{va+i}, v{va+i}, v{vb+i}")
    g.slot()
    g("s_nop 0")
    for i in range(4):
        g(f"v_permlane16_swap_b32 v{va+i}, v{va+4+i}")
    for i in range(4):
        g(f"v_add_f32 v{va+i}, v{va+i}, v{va+4+i}")
    g.slot()
    for rot in (8, 4, 2, 1):
        for i in range(4):
            g(f"v_add_f32_dpp v{va+i}, v{va+i}, v{va+i} row_ror:{rot} row_mask:0xf bank_mask:0xf")
        if rot in (4, 1): g.slot()
    g("v_lshrrev_b32 v2, 4, v1")
    g("v_lshrrev_b32 v3, 1, v2")
    g("v_and_b32 v2, 1, v2")
    g("v_lshlrev_b32 v3, 7, v3")
    g("v_lshl_add_u32 v2, v2, 6, v3")
    g(f"s_lshl_b32 s{sT0}, s{sWV}, 2")
    g(f"s_add_u32 s{sT0}, s{sT0}, {LS}")
    g(f"v_add_u32 v2, s{sT0}, v2")
    g(f"s_mov_b64 s[{sEX}:{sEX+1}], exec")
    g(f"s_mov_b32 exec_lo, 0x00010001")
    g(f"s_mov_b32 exec_hi, 0x00010001")
    for i in range(4):
        g.ds(f"ds_write_b32 v2, v{va+i} offset:{16*i}")
    g(f"s_mov_b64 exec, s[{sEX}:{sEX+1}]")
    g("v_and_b32 v2, 7, v1")
    g("v_lshlrev_b32 v2, 4, v2")
    g(f"v_add_u32 v2, {LS}, v2")
    g(f"s_mov_b32 s{sT0}, 0x3b124925")
    g(f"s_mov_b32 s{sT1}, 0x3727c5ac")
    g.slot()
    g.wait_lg_all()
    g("s_barrier")
    g.ds(f"ds_read_b128 {r(va,4)}, v2")
    g.ds(f"ds_read_b128 {r(va+4,4)}, v2 offset:128")
    g.slot()
    g.wait_lg_all()
    g(f"v_add_f32 v{va}, v{va}, v{va+1}")
    g(f"v_add_f32 v{va+4}, v{va+4}, v{va+5}")
    g(f"v_add_f32 v{va+2}, v{va+2}, v{va+3}")
    g(f"v_add_f32 v{va+6}, v{va+6}, v{va+7}")
    g(f"v_add_f32 v{va}, v{va}, v{va+2}")
    g(f"v_add_f32 v{va+4}, v{va+4}, v{va+6}")
    g(f"v_mul_f32 v{va}, s{sT0}, v{va}")
    g(f"v_mul_f32 v{va+4}, s{sT0}, v{va+4}")
    g(f"v_fma_f32 v{va+4}, -v{va}, v{va}, v{va+4}")
    g(f"v_max_f32 v{va+4}, 0, v{va+4}")
    g(f"v_add_f32 v{va+5}, s{sT1}, v{va+4}")
    g(f"v_rsq_f32 v{va+5}, v{va+5}")
    if mode == "ln2":
        g("s_nop 0")
        g(f"v_mul_f32 v{va+6}, v{va+5}, v{va+5}")
        g(f"v_mul_f32 v{va+6}, v{va+6}, v{va+4}")
        g(f"v_add_f32 v{va+6}, s{sT1}, v{va+6}")
        g(f"v_rsq_f32 v{va+6}, v{va+6}")
        g("s_nop 0")
        g(f"v_mul_f32 v{va+5}, v{va+5}, v{va+6}")
    g("s_nop 1")
    for i in range(8):
        g(f"v_readlane_b32 s{sST+2*i}, v{va}, {i}")
        g(f"v_readlane_b32 s{sST+2*i+1}, v{va+5}, {i}")
        if i % 4 == 3: g.slot()
    g("s_nop 1")


def slot_a(g):
    Lskip = g.uid("L_noconv")
    g(f"s_cmp_ge_u32 s{sY}, 28")
    g(f"s_cbranch_scc1 {Lskip}")
    g.wait_vm(g.ssm_id)
    g("v_lshlrev_b32 v2, 4, v0")
    toeplitz_pass(g, vSW0, 2, L_TOEP)
    toeplitz_pass(g, vSW1, 2, L_TOEP + TOEP_CH)
    Lx = g.uid("L_noextra")
    g(f"s_cmp_eq_u32 s{sWV}, 0")
    g(f"s_cbranch_scc0 {Lx}")
    g("v_cmp_le_u32 vcc, 4, v1")
    g("v_mov_b32 v2, 0")
    g(f"v_mov_b32 v3, {TOEP_CH - 64}")
    g("v_cndmask_b32 v2, v2, v3, vcc")
    g("v_lshlrev_b32 v3, 4, v1")
    g("v_add_u32 v2, v2, v3")
    g(f"v_add_u32 v2, {16*256}, v2")
    g(f"s_mov_b64 s[{sEX}:{sEX+1}], exec")
    g("s_mov_b64 exec, 0xff")
    toeplitz_pass(g, vSWX, 2, L_TOEP)
    g(f"s_mov_b64 exec, s[{sEX}:{sEX+1}]")
    g.label(Lx)
    g("v_mov_b32 v128, 0\nv_mov_b32 v129, 0\nv_mov_b32 v130, 0\nv_mov_b32 v131, 0")
    g("v_lshlrev_b32 v2, 4, v0")
    g(f"v_add_u32 v2, {L_U}, v2")
    g("v_cmp_gt_u32 vcc, 160, v0")
    g(f"s_and_saveexec_b64 s[{sEX}:{sEX+1}], vcc")
    Lz = g.uid("L_noz")
    g(f"s_cbranch_execz {Lz}")
    g.ds(f"ds_write_b128 v2, v[128:131]")
    g.ds(f"ds_write_b128 v2, v[128:131] offset:{U_CH}")
    g.label(Lz)
    g(f"s_mov_b64 exec, s[{sEX}:{sEX+1}]")
    g.label(Lskip)
    g.stamp("slot A done")


def q_stats(g):
    for rr in range(8):
        unpack_lo(g, vQF + 2*rr, vQK + rr)
        unpack_hi(g, vQF + 2*rr + 1, vQK + rr)
        if rr % 4 == 3: g.slot()
    va, vb = 128, 136
    for rr in range(8):
        g(f"v_add_f32 v{va+rr}, v{vQF+2*rr}, v{vQF+2*rr+1}")
        g(f"v_mul_f32 v{vb+rr}, v{vQF+2*rr}, v{vQF+2*rr}")
        g(f"v_fmac_f32 v{vb+rr}, v{vQF+2*rr+1}, v{vQF+2*rr+1}")
        if rr % 3 == 2: g.slot()
    g("s_nop 1")
    rowstats(g, va, vb, "ln1")
    for rr in range(8):
        g(f"v_pk_add_f32 {r(vQN+2*rr,2)}, {r(vQF+2*rr,2)}, s[{sST+2*rr}:{sST+2*rr+1}] op_sel:[0,0] op_sel_hi:[1,0] neg_lo:[0,1] neg_hi:[0,1]")
        g(f"v_pk_mul_f32 {r(vQN+2*rr,2)}, {r(vQN+2*rr,2)}, s[{sST+2*rr}:{sST+2*rr+1}] op_sel:[0,1] op_sel_hi:[1,1]")
        if rr % 4 == 3: g.slot()
    unpack_lo(g, 128, vDK)
    unpack_hi(g, 129, vDK)
    for rr in range(8):
        i = (7 - rr) >> 1
        for c in range(2):
            (unpack_lo if rr & 1 else unpack_hi)(g, vKVD + 2*rr + c, kvreg(c, i))
        g(f"v_pk_mul_f32 {r(vKVD+2*rr,2)}, {r(vKVD+2*rr,2)}, v[128:129]")
        if rr % 3 == 2: g.slot()
    g.flush()


vACC0, vACC1, vFR = 64, 80, 96


def p1(g):
    Lskip = g.uid("L_noconv"); Lend = g.uid("L_convend")
    g(f"s_cmp_ge_u32 s{sY}, 28")
    g(f"s_cbranch_scc1 {Lskip}")
    if OPT["qpos"] == 2:
        g.wait_vm(g.q_id)
        q_stats(g)
    tr_addr(g)
    g(f"s_sub_u32 s{sT0}, s{sRA}, s{sWB}")
    g(f"v_add_u32 v28, s{sT0}, v{vTR0}")
    g(f"v_add_u32 v29, s{sT0}, v{vTR1}")
    g(f"s_lshl_b32 s{sT1}, s{sCT}, 4")
    g(f"s_add_u32 s{sT1}, s{sT1}, {KVT}")
    g(f"v_mul_u32_u24 v3, {KSLAB}, v0")
    g(f"v_add_u32 v3, s{sT1}, v3")
    g("v_lshrrev_b32 v4, 2, v0")
    g("v_mul_u32_u24 v4, 80, v4")
    g("v_and_b32 v5, 3, v0")
    g("v_lshl_add_u32 v4, v5, 4, v4")
    g(f"v_add_u32 v4, {L_U + 32*80}, v4")
    g("v_and_b32 v6, 31, v1")
    g("v_lshrrev_b32 v7, 5, v1")
    g(f"s_lshr_b32 s{sT4}, s{sWV}, 1")
    g(f"s_and_b32 s{sT5}, s{sWV}, 1")
    g("v_and_b32 v17, 3, v6")
    g(f"v_mul_u32_u24 v16, {TOEP_P}, v17")
    g("v_lshrrev_b32 v17, 2, v6")
    g("v_lshl_add_u32 v16, v17, 3, v16")
    g("v_lshlrev_b32 v17, 4, v7")
    g("v_sub_u32 v16, v16, v17")
    g(f"s_mul_i32 s{sT2}, s{sT4}, {TOEP_CH}")
    g(f"s_lshl_b32 s{sT3}, s{sT5}, 5")
    g(f"s_sub_u32 s{sT2}, s{sT2}, s{sT3}")
    g(f"s_add_u32 s{sT2}, s{sT2}, {L_TOEP + 48}")
    g(f"v_add_u32 v16, s{sT2}, v16")
    g("v_mul_u32_u24 v18, 80, v6")
    g("v_lshl_add_u32 v18, v7, 4, v18")
    g(f"s_mul_i32 s{sT2}, s{sT4}, {U_CH}")
    g(f"s_add_u32 s{sT2}, s{sT2}, s{sT3}")
    g(f"s_add_u32 s{sT2}, s{sT2}, {L_U + 80}")
    g(f"v_add_u32 v18, s{sT2}, v18")
    w_src(g, 1)
    g(f"s_mov_b32 s{sC1}, {2*PLANE}")
    gather_tagged(g, 3, ["0", "0", f"s{sC1}"], [0, PLANE, 0], 44)
    g.stamp("p1 kv landed")
    g("v_mov_b32 v47, v52")
    g("v_mov_b32 v51, v53")
    g.ds(f"ds_write_b128 v4, v[44:47]")
    g.ds(f"ds_write_b128 v4, v[48:51] offset:{U_CH}")
    if OPT["qpos"] == 1:
        q_stats(g)
    g.wait_lg_all()
    g("s_barrier")
    g.stamp("p1 start mfma")
    DEPTH = 2
    def rd(m, which):
        b = vFR + 16 * (m % (DEPTH + 1))
        if which == 0:
            g.ds(f"ds_read_b64 {r(b,2)}, v16 offset:{64*m}")
            return g.ds(f"ds_read_b64 {r(b+2,2)}, v16 offset:{64*m + 8}")
        if which == 1: return g.ds(f"ds_read_b128 {r(b+8,4)}, v18 offset:{(31-m)*80}")
        if which == 2: return g.ds(f"ds_read_b128 {r(b+12,4)}, v18 offset:{(63-m)*80}")
        g.ds(f"ds_read_b64 {r(b+4,2)}, v16 offset:{64*(m+32)}")
        return g.ds(f"ds_read_b64 {r(b+6,2)}, v16 offset:{64*(m+32) + 8}")
    last = {}
    for m in range(DEPTH):
        for w in range(4):
            last[m] = rd(m, w)
    g.m0key = None
    dma_a = None
    nda = 0
    pf1 = mall_prefetch(g, 1, pieces=True, conv=True) if OPT["mall1"] == 5 else []
    pf = mall_prefetch(g, 2, pieces=True) if OPT["mall2"] else []
    d0 = OPT["dma_from"]
    for m in range(32):
        g.wait_lg(last[m])
        b = vFR + 16 * (m % (DEPTH + 1))
        c0 = "0" if m == 0 else r(vACC0, 16)
        c1 = "0" if m == 0 else r(vACC1, 16)
        nx = m + DEPTH
        g(f"v_mfma_f32_32x32x16_bf16 {r(vACC0,16)}, {r(b,4)}, {r(b+8,4)}, {c0}")
        if nx < 32:
            rd(nx, 0); rd(nx, 1)
        g(f"v_mfma_f32_32x32x16_bf16 {r(vACC1,16)}, {r(b,4)}, {r(b+12,4)}, {c1}")
        if nx < 32:
            rd(nx, 2); last[nx] = rd(nx, 3)
        g(f"v_mfma_f32_32x32x16_bf16 {r(vACC1,16)}, {r(b+4,4)}, {r(b+8,4)}, {r(vACC1,16)}")
        if pf1:
            pf1.pop(0)()
        elif pf and m >= OPT["pf_at"]:
            pf.pop(0)()
        while m >= d0 and nda < 2 * KA and nda * (32 - d0) <= (m - d0) * 2 * KA:
            dma_a = w_dma_block(g, 1, nda >> 1, nda & 1, nda >> 1, sbase=sRA)
            nda += 1
    assert nda == 2 * KA and not pf1
    assert not pf
    g.stamp("p1 mfma done")
    g("s_barrier")
    g("v_lshlrev_b32 v4, 4, v1")
    g(f"s_lshl_b32 s{sT2}, s{sWV}, 11")
    g(f"v_add_u32 v5, s{sT2}, v4")
    g(f"s_lshl_b32 s{sT2}, s{sWV}, 13")
    g(f"v_add_u32 v6, s{sT2}, v4")
    g(f"s_mul_i32 s{sT2}, s{sCT}, {YSLAB}")
    g(f"s_lshl_b32 s{sT3}, s{sWV}, 10")
    g(f"s_add_u32 s{sT2}, s{sT2}, s{sT3}")
    g(f"s_add_u32 s{sT2}, s{sT2}, {YT}")
    g(f"v_add_u32 v7, s{sT2}, v4")
    g(f"s_mov_b32 s{sT2}, 4096")
    g(f"s_mov_b32 s{sT3}, 8192")
    g.nop(3)
    for ow in range(4):
        acc = vACC0 if ow < 2 else vACC1
        for hf in range(2):
            g.ds(f"ds_write_b128 v5, {r(acc + 8*(ow & 1) + 4*hf, 4)} offset:{ow*8192 + hf*1024}")
    g.wait_lg_all()
    g("s_barrier")
    for src in range(4):
        for hf in range(2):
            g.ds(f"ds_read_b128 {r(vFR + 8*src + 4*hf, 4)}, v6 offset:{src*2048 + hf*1024}")
    g.wait_lg_all()
    for i in range(0, 8, 2):
        g(f"v_pk_add_f32 {r(vFR+i,2)}, {r(vFR+i,2)}, {r(vFR+8+i,2)}")
        g(f"v_pk_add_f32 {r(vFR+16+i,2)}, {r(vFR+16+i,2)}, {r(vFR+24+i,2)}")
    Gb = vFR + 32
    for c in range(2):
        for i in range(4):
            g(f"v_cvt_pk_bf16_f32 v{Gb+4*c+i}, v{vFR+16*c+2*i}, v{vFR+16*c+2*i+1}")
    g(f"v_mov_b32 v{Gb+10}, 0")
    g(f"v_mov_b32 v{Gb+11}, s{sNONCE}")
    for c in range(2):
        g(f"v_permlane32_swap_b32 v{Gb+4*c}, v{Gb+4*c+2}")
        g(f"v_permlane32_swap_b32 v{Gb+4*c+1}, v{Gb+4*c+3}")
    g(f"v_mov_b32 v{Gb+8}, v{Gb+3}")
    g(f"v_mov_b32 v{Gb+9}, v{Gb+7}")
    g(f"v_mov_b32 v{Gb+3}, s{sNONCE}")
    g(f"v_mov_b32 v{Gb+7}, s{sNONCE}")
    g.vmem(f"buffer_store_dwordx4 {r(Gb+8,4)}, v7, {sr(sWS)}, s{sT3} offen sc1")
    g.vmem(f"buffer_store_dwordx4 {r(Gb,4)}, v7, {sr(sWS)}, 0 offen sc1")
    ist = g.vmem(f"buffer_store_dwordx4 {r(Gb+4,4)}, v7, {sr(sWS)}, s{sT2} offen sc1")
    g.stamp("p1 stores issued")
    if g.profile is True: ist = g.vm
    g.wait_vm(dma_a)
    w_tr(g, 0, KA, 0, va=28)
    g.wait_lg_all()
    g("s_barrier")
    blocks = [(KA + (i >> 1), i & 1, i >> 1) for i in range(32)]
    g.m0key = None
    for (k, hf, sl) in blocks:
        g.pending.append(lambda k=k, hf=hf, sl=sl: w_dma_block(g, 1, k, hf, sl))
    if OPT["qpos"] == 0:
        q_stats(g)
    g.flush()
    g.stamp("p1 W staged")
    g(f"s_branch {Lend}")
    g.label(Lskip)
    if OPT["pf1"] == 2:
        l2_prefetch(g, 1)
        g(f"s_waitcnt vmcnt({min(63, (S // 32))})")
    else:
        g.wait_vm_all()
    q_stats(g)
    if OPT["pf1"] == 1:
        l2_prefetch(g, 1)
    if OPT["pf2"] == 2:
        l2_prefetch(g, 2)
    g.label(Lend)
    g.stamp("q stats done")


def p2(g):
    g(f"s_lshr_b32 s{sT0}, s{sJ}, 7")
    g(f"s_lshl_b32 s{sT0}, s{sT0}, 7")
    g(f"s_and_b32 s{sT1}, s{sJ}, 3")
    g(f"s_lshl_b32 s{sT1}, s{sT1}, 5")
    g(f"s_add_u32 s{sT0}, s{sT0}, s{sT1}")
    g(f"s_bfe_u32 s{sT1}, s{sJ}, {(5 << 16) | 2}")
    g(f"s_add_u32 s{sT0}, s{sT0}, s{sT1}")
    g(f"s_lshl_b32 s{sT0}, s{sT0}, 4")
    g(f"s_add_u32 s{sT4}, s{sT0}, {YT}")
    g(f"s_add_u32 s{sT5}, s{sT4}, 4096")
    g(f"s_add_u32 s{sC2}, s{sT4}, 8192")
    g(f"v_mov_b32 v6, {BIG:#x}")
    g(f"v_mul_u32_u24 v19, {YSLAB}, v0")
    g("v_cmp_gt_u32 vcc, 224, v0")
    g(f"s_mul_i32 s{sT1}, s{sJ}, {OCT}")
    g("v_lshlrev_b32 v5, 4, v0")
    g(f"v_add_u32 v5, s{sT1}, v5")
    g("v_cndmask_b32 v19, v6, v19, vcc")
    g("v_cndmask_b32 v5, v6, v5, vcc")
    g("v_lshlrev_b32 v27, 2, v0")
    g(f"v_add_u32 v27, s{sT1}, v27")
    g("v_cndmask_b32 v27, v6, v27, vcc")
    g(f"v_add_u32 v28, {4*896}, v27")
    g("v_mov_b32 v29, v5")
    tr_addr(g)
    for i in range(12):
        g(f"v_mov_b32 v{44+i}, 0")
    g(f"s_cmp_eq_u32 s{sWV}, 3")
    g(f"s_cselect_b32 s{sT0}, 0, -1")
    g(f"s_mov_b64 s[{sEX+0}:{sEX+1}], exec")
    g(f"s_mov_b32 exec_hi, s{sT0}")
    gather_tagged(g, 19, [f"s{sT4}", f"s{sT5}", f"s{sC2}"], [0, 0, 0], 44)
    g("s_mov_b64 exec, -1")
    g.stamp("p2 y landed")
    vH = 32
    for rr in range(8):
        for c in range(2):
            i = rr >> 1
            (unpack_hi if rr & 1 else unpack_lo)(g, vH + 2*rr + c, 44 + 4*c + i if i < 3 else 52 + c)
    for rr in range(8):
        g(f"v_pk_add_f32 {r(vH+2*rr,2)}, {r(vH+2*rr,2)}, {r(vKVD+2*rr,2)}")
    for rr in range(8):
        g(f"v_pk_fma_f32 {r(vH+2*rr,2)}, {r(vQN+2*rr,2)}, {r(vH+2*rr,2)}, {r(vQF+2*rr,2)}")
    va, vb = 64, 72
    for rr in range(8):
        g(f"v_add_f32 v{va+rr}, v{vH+2*rr}, v{vH+2*rr+1}")
        g(f"v_mul_f32 v{vb+rr}, v{vH+2*rr}, v{vH+2*rr}")
        g(f"v_fmac_f32 v{vb+rr}, v{vH+2*rr+1}, v{vH+2*rr+1}")
    for rr in range(8):
        g(f"v_cvt_pk_bf16_f32 v{16+rr}, v{vH+2*rr}, v{vH+2*rr+1}")
    g(f"s_mov_b32 s{sT2}, {HH}")
    for rr in range(8):
        if rr < 4:
            g.vmem(f"buffer_store_dword v{16+rr}, v27, {sr(sWS)}, s{sT2} offen offset:{rr*896} sc1")
        else:
            g.vmem(f"buffer_store_dword v{16+rr}, v28, {sr(sWS)}, s{sT2} offen offset:{(rr-4)*896} sc1")
    rowstats(g, va, vb, "ln2")
    for rr in range(8):
        g(f"v_pk_add_f32 {r(vH+2*rr,2)}, {r(vH+2*rr,2)}, s[{sST+2*rr}:{sST+2*rr+1}] op_sel:[0,0] op_sel_hi:[1,0] neg_lo:[0,1] neg_hi:[0,1]")
        g(f"v_pk_mul_f32 {r(vH+2*rr,2)}, {r(vH+2*rr,2)}, s[{sST+2*rr}:{sST+2*rr+1}] op_sel:[0,1] op_sel_hi:[1,1]")
    for c in range(2):
        for i in range(4):
            g(f"v_cvt_pk_bf16_f32 v{8+4*c+i}, v{vH+2*(2*i)+c}, v{vH+2*(2*i+1)+c}")
    g(f"s_mov_b32 s{sT2}, {HNT}")
    g.vmem(f"buffer_store_dwordx4 v[8:11], v29, {sr(sWS)}, s{sT2} offen sc1")
    ist = g.vmem(f"buffer_store_dwordx4 v[12:15], v29, {sr(sWS)}, s{sT2} offen offset:{PLANE} sc1")
    g.stamp("p2 stores issued")
    if g.profile is True: ist = g.vm
    Ln = g.uid("L_noconv"); Lj = g.uid("L_join")
    g(f"s_cmp_ge_u32 s{sY}, 28")
    g(f"s_cbranch_scc1 {Ln}")
    w_tr(g, KA, 16, 0)
    g.wait_lg_all()
    nd = OPT["drain_dma"]
    NC = 32 - KA - 16
    g.m0key = None
    for i in range(2*NC):
        w_dma_block(g, 1, KA + 16 + (i >> 1), i & 1, i >> 1)
    w_src(g, 2)
    blocks = [(i >> 1, i & 1, NC + (i >> 1)) for i in range(2*(16 - NC))]
    nd2 = max(0, nd - 2*NC)
    g.m0key = None
    for (k, hf, sl) in blocks[:nd2]:
        w_dma_block(g, 2, k, hf, sl)
    g.wait_vm(ist)
    flag_store(g, FLAG2, sJ)
    g.stamp("p2 flag out")
    for (k, hf, sl) in blocks[nd2:]:
        w_dma_block(g, 2, k, hf, sl)
    g(f"s_branch {Lj}")
    g.label(Ln)
    g.wait_vm_all()
    flag_store(g, FLAG2, sJ)
    if OPT["pf2"] == 1:
        l2_prefetch(g, 2)
    g.label(Lj)
    g.stamp("p2 published")


vACC = 96
vXR = 160
NSLOT_MAX = 24


def gemm(g, which):
    NSLOT = OPT["nslot"]
    nk = 32 if which == 1 else 28
    NC = 32 - KA - 16
    KB = 16 - NC
    R2 = min(16, 28 - KB)
    R3 = 28 - KB - R2
    Lskip = g.uid("L_nogemm")
    g.sreg = (30, 27)
    if which == 1:
        g(f"s_cmp_eq_u32 s{sR1}, 0")
        g(f"s_cbranch_scc1 {Lskip}")
    else:
        g(f"s_cmp_ge_u32 s{sY}, 28")
        g(f"s_cbranch_scc1 {Lskip}")
        Lh = g.uid("L_have")
        g(f"s_cmp_eq_u32 s{sR1}, 1")
        g(f"s_cbranch_scc1 {Lh}")
        g.wait_vm_all()
        w_tr(g, 0, KB, NC)
        g.wait_lg_all()
        w_dma(g, 2, KB, R2, 0)
        g.label(Lh)
    if which == 1:
        g(f"s_lshl_b32 s{sT0}, s{sWV}, 6")
        g(f"v_add_u32 v2, s{sT0}, v1")
        g(f"v_mul_u32_u24 v2, {4*FSTR}, v2")
        g(f"s_lshr_b32 s{sT0}, s{sDT}, 1")
        g(f"s_mul_i32 s{sT0}, s{sT0}, {FSTR}")
        g(f"s_add_u32 s{sT0}, s{sT0}, {FLAG2}")
        g(f"v_add_u32 v2, s{sT0}, v2")
    else:
        g("v_min_u32 v3, 27, v1")
        g("v_lshrrev_b32 v2, 2, v3")
        g(f"s_mul_i32 s{sT0}, s{sWV}, 7")
        g(f"v_add_u32 v2, s{sT0}, v2")
        g("v_mul_u32_u24 v2, 7, v2")
        g(f"v_add_u32 v2, s{sDT}, v2")
        g("v_lshlrev_b32 v2, 2, v2")
        g("v_and_b32 v3, 3, v3")
        g("v_add_u32 v2, v2, v3")
        g(f"v_mul_u32_u24 v2, {FSTR}, v2")
        g(f"v_add_u32 v2, {FLAG3}, v2")
    g("v_and_b32 v6, 31, v1")
    g("v_lshrrev_b32 v7, 5, v1")
    g(f"v_mul_u32_u24 v3, {OCT}, v7")
    g("v_lshl_add_u32 v3, v6, 4, v3")
    g(f"s_mul_i32 s{sT0}, s{sWV}, {2*nk*OCT}")
    g(f"s_lshl_b32 s{sT1}, s{sDT}, 9")
    g(f"s_add_u32 s{sT0}, s{sT0}, s{sT1}")
    g(f"s_add_u32 s{sT0}, s{sT0}, {HNT if which == 1 else UT}")
    g(f"v_add_u32 v3, s{sT0}, v3")
    u_nt = sT2; u_rh = sT3
    g(f"s_lshr_b32 s{u_nt}, s{sWV}, 1")
    g(f"s_and_b32 s{u_rh}, s{sWV}, 1")
    vBI = 16
    if which == 1:
        g(f"s_lshl_b32 s{sT0}, s{sFT}, 6")
        g(f"s_lshl_b32 s{sT1}, s{u_nt}, 5")
        g(f"s_add_u32 s{sT0}, s{sT0}, s{sT1}")
        g(f"s_lshl_b32 s{sT1}, s{u_rh}, 4")
        g(f"s_add_u32 s{sT0}, s{sT0}, s{sT1}")
        g(f"s_lshl_b32 s{sT0}, s{sT0}, 1")
        g("v_lshlrev_b32 v4, 3, v7")
        g(f"v_add_u32 v4, s{sT0}, v4")
        g.vmem(f"buffer_load_dwordx2 v[10:11], v4, {sr(sB1)}, 0 offen")
        g.vmem(f"buffer_load_dwordx2 v[12:13], v4, {sr(sB1)}, 0 offen offset:16")
        g(f"s_lshl_b32 s{sT0}, s{sFT}, 3")
        g(f"s_lshl_b32 s{sT1}, s{u_nt}, 2")
        g(f"s_add_u32 s{sT0}, s{sT0}, s{sT1}")
        g(f"s_lshl_b32 s{sT1}, s{u_rh}, 1")
        g(f"s_add_u32 s{sT0}, s{sT0}, s{sT1}")
        g(f"v_add_u32 v14, s{sT0}, v7")
        g(f"v_mul_u32_u24 v14, {OCT}, v14")
        g("v_lshl_add_u32 v14, v6, 4, v14")
        g(f"s_lshl_b32 s{sT0}, s{sDT}, 9")
        g(f"s_add_u32 s{sT0}, s{sT0}, {UT}")
        g(f"v_add_u32 v14, s{sT0}, v14")
    else:
        g(f"s_lshl_b32 s{sT0}, s{sSTL}, 6")
        g(f"s_lshl_b32 s{sT1}, s{u_nt}, 5")
        g(f"s_add_u32 s{sT0}, s{sT0}, s{sT1}")
        g(f"v_add_u32 v4, s{sT0}, v6")
        g("v_lshlrev_b32 v5, 1, v4")
        g.vmem(f"buffer_load_ushort v10, v5, {sr(sB2)}, 0 offen")
        g("v_mul_u32_u24 v14, 896, v4")
        g(f"s_lshl_b32 s{sT0}, s{sDT}, 7")
        g(f"s_lshl_b32 s{sT1}, s{u_rh}, 6")
        g(f"s_add_u32 s{sT0}, s{sT0}, s{sT1}")
        g(f"v_add_u32 v14, s{sT0}, v14")
        g("v_lshl_add_u32 v14, v7, 4, v14")
    g("v_lshlrev_b32 v4, 4, v1")
    g(f"v_add_u32 v4, {L_RED}, v4")
    g(f"s_lshl_b32 s{sT0}, s{sWV}, 11")
    g(f"v_add_u32 v5, s{sT0}, v4")
    g(f"s_lshl_b32 s{sT0}, s{sWV}, 13")
    g(f"v_add_u32 v4, s{sT0}, v4")
    poll(g, [2], 8)
    g.stamp(f"g{which} flags seen")
    seq = [(pp, k) for pp in range(2) for k in range(nk)]
    ids = {}
    def xissue(n):
        pp, k = seq[n]
        g(f"s_mov_b32 s{sOFF}, {k * 2 * OCT}")
        ids[n] = g.vmem(f"buffer_load_dwordx4 {r(vXR + 4*(n % NSLOT), 4)}, v3, {sr(sWS)}, s{sOFF} offen offset:{PLANE*pp} sc1")
    for n in range(NSLOT):
        xissue(n)
    vHR = 72
    if which == 2:
        g(f"s_mov_b32 s{sT0}, {HH}")
        for q2 in range(2):
            g.vmem(f"buffer_load_dwordx4 {r(vHR + 4*q2, 4)}, v14, {sr(sWS)}, s{sT0} offen offset:{32*q2} sc1")
    r3 = None
    if which == 2:
        w_tr(g, KB, R2, 0)
        if R3:
            g.wait_lg_all()
            r3 = w_dma(g, 2, KB + R2, R3, 0)
    else:
        w_tr(g, 32 - NC, NC, 0)
    if which == 1:
        for i in range(4):
            (unpack_hi if i & 1 else unpack_lo)(g, vBI + i, 10 + (i >> 1))
            (unpack_hi if i & 1 else unpack_lo)(g, vBI + 4 + i, 12 + (i >> 1))
    else:
        unpack_lo(g, vBI, 10)
    g.wait_lg_all()

    def reduce_pieces(pp, T):
        acc = lambda nt: vACC + 32*pp + 16*nt
        P = []
        def wr(u0):
            def f():
                if u0 == 0:
                    g("s_barrier")
                for u in (u0, u0 + 1):
                    nt, rh = u >> 1, u & 1
                    for hf in range(2):
                        g.ds(f"ds_write_b128 v5, {r(acc(nt) + 8*rh + 4*hf, 4)} offset:{u*8192 + hf*1024}")
            return f
        P.append(wr(0)); P.append(wr(2))
        def sync():
            g.wait_lg_all()
            g("s_barrier")
            for src in range(4):
                for hf in range(2):
                    g.ds(f"ds_read_b128 {r(32 + 8*src + 4*hf, 4)}, v4 offset:{src*2048 + hf*1024}")
        P.append(sync)
        def add1():
            g.wait_lg_all()
            for i in range(0, 8, 2):
                g(f"v_pk_add_f32 {r(32+i,2)}, {r(32+i,2)}, {r(40+i,2)}")
                g(f"v_pk_add_f32 {r(48+i,2)}, {r(48+i,2)}, {r(56+i,2)}")
        P.append(add1)
        def add2():
            for i in range(0, 8, 2):
                g(f"v_pk_add_f32 {r(T+i,2)}, {r(32+i,2)}, {r(48+i,2)}")
        P.append(add2)
        return P

    def gelu_pieces(pp, out):
        T = 32; U = T + 8; Pk = T + 16
        P = []
        def a():
            for i in range(0, 8, 2):
                g(f"v_pk_add_f32 {r(T+i,2)}, {r(T+i,2)}, {r(vBI+i,2)}")
            g(f"s_mov_b32 s{sC1}, 0xc0135761")
            g(f"s_mov_b32 s{sC2}, 0xbdd2d3e8")
            g(f"v_mov_b32 v{T+16}, s{sC1}")
            for i in range(0, 8, 2):
                g(f"v_pk_mul_f32 {r(U+i,2)}, {r(T+i,2)}, {r(T+i,2)}")
        def b():
            for i in range(8):
                g(f"v_fma_f32 v{U+i}, v{U+i}, s{sC2}, v{T+16}")
            for i in range(0, 8, 2):
                g(f"v_pk_mul_f32 {r(U+i,2)}, {r(U+i,2)}, {r(T+i,2)}")
        def c(lo):
            def f():
                for i in range(lo, lo + 4):
                    g(f"v_exp_f32 v{U+i}, v{U+i}")
            return f
        def d():
            for i in range(8):
                g(f"v_add_f32 v{U+i}, 1.0, v{U+i}")
        def e(lo):
            def f():
                for i in range(lo, lo + 4):
                    g(f"v_rcp_f32 v{U+i}, v{U+i}")
            return f
        def h():
            g("s_nop 0")
            for i in range(0, 8, 2):
                g(f"v_pk_mul_f32 {r(T+i,2)}, {r(T+i,2)}, {r(U+i,2)}")
            for i in range(4):
                g(f"v_cvt_pk_bf16_f32 v{Pk+i}, v{T+2*i}, v{T+2*i+1}")
        def st():
            g("s_nop 1")
            g(f"v_permlane32_swap_b32 v{Pk}, v{Pk+2}")
            g(f"v_permlane32_swap_b32 v{Pk+1}, v{Pk+3}")
            out.append(g.vmem(f"buffer_store_dwordx4 {r(Pk,4)}, v14, {sr(sWS)}, 0 offen offset:{PLANE*pp} sc1"))
        return [a, b, c(0), c(4), d, e(0), e(4), h, st]

    n = 0
    sts = []
    ops = []
    for pp in range(2):
        for k in range(nk):
            if r3 is not None and pp == 0 and k == KB + R2 - 3:
                g.wait_vm(r3)
                w_tr(g, KB + R2, R3, 0)
            if r3 is not None and pp == 0 and k == KB + R2:
                g.wait_lg_all()
            g.wait_vm(ids[n])
            x = r(vXR + 4*(n % NSLOT), 4)
            for nt in range(2):
                acc = r(vACC + 32*pp + 16*nt, 16)
                c = "0" if k == 0 else acc
                w = ar(8*k + 4*nt, 4)
                if which == 1:
                    g(f"v_mfma_f32_32x32x16_bf16 {acc}, {w}, {x}, {c}")
                else:
                    g(f"v_mfma_f32_32x32x16_bf16 {acc}, {x}, {w}, {c}")
                if OPT["xpos"] == 1 and nt == 1 and n + NSLOT < len(seq):
                    xissue(n + NSLOT)
                if OPT["xpos"] == 0 and nt == 0 and n >= 1 and n - 1 + NSLOT < len(seq):
                    xissue(n - 1 + NSLOT)
                if pp == 1 and k >= 2:
                    g.gap(ops, OPT["gap"])
            n += 1
        g.stamp(f"g{which} pass {pp} mfma done")
        g.gap(ops, 1000)
        if pp == 0:
            fns = reduce_pieces(0, 32 if which == 1 else 64)
            if which == 1:
                fns += gelu_pieces(0, [])
            ops = g.record(fns, sts)
        else:
            g.nop(12)
            for f in reduce_pieces(1, 32): f()
            if which == 1:
                for f in gelu_pieces(1, sts): f()
    if which == 1:
        ist = sts[-1]
        g.stamp("g1 u stores issued")
        if g.profile is True: ist = g.vm
    if which == 1:
        g(f"s_mul_i32 s{sT4}, s{sFT}, 7")
        g(f"s_add_u32 s{sT4}, s{sT4}, s{sDT}")
        w_tr(g, 0, KB, NC)
        g.wait_lg_all()
        nd = OPT["drain_dma3"]
        blocks = [(KB + (i >> 1), i & 1, i >> 1) for i in range(2*R2)]
        g.m0key = None
        for (k, hf, sl) in blocks[:nd]:
            w_dma_block(g, 2, k, hf, sl)
        g.wait_vm(ist)
        flag_store(g, FLAG3, sT4)
        g.stamp("g1 flag out")
        for (k, hf, sl) in blocks[nd:]:
            w_dma_block(g, 2, k, hf, sl)
    else:
        for i in range(8):
            unpack_lo(g, 40 + i, vHR + i)
            unpack_hi(g, 48 + i, vHR + i)
        for i in range(8):
            g(f"v_add_f32 v{64+i}, v{64+i}, v{vBI}")
            g(f"v_add_f32 v{32+i}, v{32+i}, v{vBI}")
        for i in range(0, 8, 2):
            g(f"v_pk_add_f32 {r(64+i,2)}, {r(64+i,2)}, {r(40+i,2)}")
            g(f"v_pk_add_f32 {r(32+i,2)}, {r(32+i,2)}, {r(48+i,2)}")
        for i in range(8):
            g(f"v_cvt_pk_bf16_f32 v{56+i}, v{64+i}, v{32+i}")
        for q2 in range(2):
            g.vmem(f"buffer_store_dwordx4 {r(56+4*q2,4)}, v14, {sr(sOUT)}, 0 offen offset:{32*q2}")
    g.stamp(f"g{which} done")
    g.label(Lskip)


def finish(g):
    g("s_cmp_eq_u32 s2, 0")
    g("s_cbranch_scc0 L_exit")
    g(f"s_cmp_eq_u32 s{sWV}, 0")
    g("s_cbranch_scc0 L_exit")
    g("v_mov_b32 v2, 0")
    g(f"v_mov_b32 v3, s{sNONCE}")
    g("s_mov_b64 exec, 1")
    g(f"buffer_store_dword v3, v2, {sr(sWS)}, 0 offen sc1")


def build(profile=False, stop_after=9):
    g = G(profile)
    g(f"; @launch grid=({NWG},1,1) block=(256,1,1) lds={LDS_BYTES}")
    g('.amdgcn_target "amdgcn-amd-amdhsa--gfx950"')
    g(".text")
    g(f".globl {KNAME}")
    g(".p2align 8")
    g(f".type {KNAME},@function")
    g(f"{KNAME}:")
    prologue(g)
    g.stamp("start")
    p0(g)
    slot_a(g)
    p1(g)
    p2(g)
    if stop_after >= 3: gemm(g, 1)
    if stop_after >= 4: gemm(g, 2)
    g.sreg = (30, 27)
    g.stamp("end")
    finish(g)
    g("L_exit:")
    g("s_endpgm")
    g('.section .rodata,"a"')
    g(".p2align 6")
    g(f".amdhsa_kernel {KNAME}")
    g("  .amdhsa_next_free_vgpr 512")
    g("  .amdhsa_next_free_sgpr 102")
    g("  .amdhsa_accum_offset 256")
    g("  .amdhsa_group_segment_fixed_size 0")
    g("  .amdhsa_kernarg_size 112")
    g("  .amdhsa_user_sgpr_count 2")
    g("  .amdhsa_user_sgpr_kernarg_segment_ptr 1")
    g("  .amdhsa_system_sgpr_workgroup_id_x 1")
    g("  .amdhsa_float_denorm_mode_32 3")
    g(".end_amdhsa_kernel")
    return g


def set_opts(argv):
    global KA, RA_W
    for a in argv:
        if a.startswith("--opt="):
            for kv in a[6:].split(","):
                k, v = kv.split("=")
                OPT[k] = int(v)
    KA = OPT.get("ka", KA)
    RA_W = KA * 2048

if __name__ == "__main__":
    set_opts(sys.argv)
    g = build(profile="--prof" in sys.argv)
    out = [a for a in sys.argv[1:] if not a.startswith("--")]
    txt = g.text()
    if out:
        open(out[0], "w").write(txt)
    else:
        sys.stdout.write(txt)
```

```python
import sys
from asmlib import A, KNAME

S, D, F = 2048, 448, 1792
NWG = 256
BIG = 0x80000000

EPOCH = 0
FLAG0, FLAG1, FLAG2, FLAG3 = 0x10000, 0x20000, 0x30000, 0x40000
FSTR = 64
KVT, YT, HNT, HH, UT = 0x100000, 0x400000, 0x700000, 0x900000, 0xB00000
PROF = 0xD00000
KSLAB = 3 * 3584
YSLAB = 3 * 4096
WS_BYTES = 0x1000000
OCT = D * 16
PLANE = OCT // 2

sQ, sK, sV, sSK, sSS, sDD, sW1, sB1, sW2, sB2, sOUT, sWS = 4, 8, 12, 16, 20, 24, 28, 32, 36, 40, 44, 48
sWV, sNONCE, sBUD, sX, sY, sCT, sDT, sFT = 52, 53, 54, 55, 56, 57, 58, 59
sT0, sT1, sT2, sT3, sT4, sT5 = 60, 61, 62, 63, 64, 65
sMASK = 66
sJ = 67
sST = 68
sEX = 84
sP0, sP1 = 86, 88
sC1, sC2 = 90, 91
sOFF = 92
sSTL = 93
sR1 = 94
sM0 = 95
sWB = 96
sRA = 97

L_TOEP = 0
TOEP_P = 4416
TOEP_CH = 4 * TOEP_P
L_U = 2 * TOEP_CH
U_CH = 7680
L_STATS = 163328
L_RED = 131072
L_RA = 51200
KA = 8
RA_W = KA * 2048
LDS_BYTES = 163840

OPT = dict(pf1=2, pf2=1, dma_step=2, drain_dma=4, mall1=0, mall2=0, ka=8, pf_at=0, drain_dma3=0, gap=3, dma_lead=0, dma_from=0, nslot=10, xpos=1, qpos=2, early=2, nt0=3, cpf=1, dbgwg=37)


DBG_STAMPS = ["start", "p0 k,v landed", "p0 stores issued", "slot A done", "p1 kv landed", "p1 start mfma", "p1 mfma done",
              "p1 W staged", "p2 y landed", "p2 stores issued", "g1 flags seen", "g1 pass 1 mfma done", "g1 flag out",
              "g2 flags seen", "g2 pass 1 mfma done", "end"]


class G(A):
    def __init__(self, profile=False):
        super().__init__()
        self.vm = 0
        self.lg = 0
        self.profile = profile
        self.nstamp = 0
        self.sreg = (152, 154)
        self.pending = []
    def slot(self, n=1):
        for _ in range(n):
            if self.pending:
                self.pending.pop(0)()
    def flush(self):
        self.slot(len(self.pending))
    def record(self, fns, ids=None):
        keep, vm, lg = self.lines, self.vm, self.lg
        self.lines = []
        for f in fns: f()
        lines, self.lines, self.vm, self.lg = self.lines, keep, vm, lg
        ops = []
        for l in lines:
            if l.startswith("ds_"):
                ops.append((3 if "write_b128" in l else 1, lambda l=l: self.ds(l)))
            elif l.startswith("buffer_"):
                ops.append((2, lambda l=l: (ids.append(self.vmem(l)) if ids is not None else self.vmem(l))))
            elif l.startswith(("v_exp", "v_rcp", "v_rsq")):
                ops.append((2, lambda l=l: self(l)))
            else:
                ops.append((1, lambda l=l: self(l)))
        return ops
    def gap(self, ops, budget):
        while ops and budget > 0:
            c, f = ops[0]
            if c > budget and budget < 3: break
            ops.pop(0); f(); budget -= c
    def vmem(self, s):
        self(s); self.vm += 1
        return self.vm
    def wait_vm(self, opid):
        n = self.vm - opid
        assert 0 <= n
        self(f"s_waitcnt vmcnt({min(n, 63)})")
    def wait_vm_all(self):
        self("s_waitcnt vmcnt(0)")
    def ds(self, s):
        self(s); self.lg += 1
        return self.lg
    def wait_lg(self, opid):
        n = self.lg - opid
        assert n >= 0
        self(f"s_waitcnt lgkmcnt({min(n, 15)})")
    def wait_lg_all(self):
        self("s_waitcnt lgkmcnt(0)")
    def nop(self, n):
        while n > 0:
            k = min(n, 16)
            self(f"s_nop {k-1}")
            n -= k
    def stamp(self, name):
        if not self.profile:
            return
        if self.profile == "lite" and name not in ("start", "end"):
            return
        if self.profile == "dbg":
            if name not in DBG_STAMPS: return
            i = DBG_STAMPS.index(name)
            a, b = self.sreg
            L = self.uid("L_nodbg")
            self(f"s_cmp_eq_u32 s2, {OPT['dbgwg']}")
            self(f"s_cbranch_scc0 {L}")
            self(f"s_cmp_eq_u32 s{sWV}, 0")
            self(f"s_cbranch_scc0 {L}")
            self(f"s_memrealtime s[{sP0}:{sP0+1}]")
            self("s_waitcnt lgkmcnt(0)")
            self(f"v_mov_b32 v{a}, s{sP0}")
            self(f"v_mov_b32 v{b}, {4*i}")
            self(f"s_mov_b64 s[{sP0}:{sP0+1}], exec")
            self("s_mov_b64 exec, 1")
            self(f"global_store_dword v{b}, v{a}, s[98:99]")
            self(f"s_mov_b64 exec, s[{sP0}:{sP0+1}]")
            self.label(L)
            self.vm += 0
            return
        i = self.nstamp; self.nstamp += 1
        a, b = self.sreg
        self(f"s_memrealtime s[{sP0}:{sP0+1}]")
        self(f"s_memtime s[{sP1}:{sP1+1}]")
        self("s_waitcnt lgkmcnt(0)")
        self(f"v_mov_b32 v{a}, s{sP0}")
        self(f"v_mov_b32 v{a+1}, s{sP1}")
        self(f"s_lshl_b32 s{sP1}, s2, 2")
        self(f"s_add_u32 s{sP1}, s{sP1}, s{sWV}")
        self(f"s_lshl_b32 s{sP1}, s{sP1}, 8")
        self(f"s_add_u32 s{sP1}, s{sP1}, {PROF + 8*i}")
        self(f"v_mov_b32 v{b}, s{sP1}")
        self(f"s_mov_b64 s[{sP0}:{sP0+1}], exec")
        self("s_mov_b64 exec, 1")
        self.vmem(f"buffer_store_dwordx2 v[{a}:{a+1}], v{b}, s[{sWS}:{sWS+3}], 0 offen")
        self(f"s_mov_b64 exec, s[{sP0}:{sP0+1}]")


def r(base, n):
    return f"v[{base}:{base+n-1}]"
def ar(base, n):
    return f"a[{base}:{base+n-1}]"
def sr(base, n=4):
    return f"s[{base}:{base+n-1}]"


def prologue(g):
    g(f"s_cmp_ge_u32 s2, {NWG}")
    g("s_cbranch_scc1 L_exit")
    for sreg, off in ((sK, 8), (sV, 16), (sSK, 24), (sWS, 104), (sSS, 32), (sQ, 0), (sDD, 40), (sW1, 56), (sB1, 64),
                      (sW2, 72), (sB2, 80), (sOUT, 88)):
        g(f"s_load_dwordx2 s[{sreg}:{sreg+1}], s[0:1], {off}")
    for sreg, nb in ((sQ, S*D*2), (sK, S*D*2), (sV, S*D*2), (sSK, D*8), (sSS, D*S*2), (sDD, D*2), (sW1, S*F*2),
                     (sB1, F*2), (sW2, S*F*2), (sB2, S*2), (sOUT, S*D*2), (sWS, WS_BYTES)):
        g(f"s_mov_b32 s{sreg+2}, {nb:#x}")
        g(f"s_mov_b32 s{sreg+3}, 0x20000")
    if g.profile == "dbg":
        g("s_load_dwordx2 s[98:99], s[0:1], 96")
    g("v_lshrrev_b32 v2, 6, v0")
    g("v_and_b32 v1, 63, v0")
    g(f"v_readfirstlane_b32 s{sWV}, v2")
    g(f"s_mov_b32 s{sMASK}, 0xffff0000")
    g(f"s_mov_b32 s{sBUD}, 0x40000")
    g(f"s_and_b32 s{sX}, s2, 7")
    g(f"s_lshr_b32 s{sY}, s2, 3")
    g(f"s_mul_i32 s{sCT}, s{sX}, 28")
    g(f"s_add_u32 s{sCT}, s{sCT}, s{sY}")
    g(f"s_lshl_b32 s{sJ}, s{sX}, 5")
    g(f"s_add_u32 s{sJ}, s{sJ}, s{sY}")
    g(f"s_mul_i32 s{sT0}, s{sY}, 37")
    g(f"s_lshr_b32 s{sT0}, s{sT0}, 8")
    g(f"s_mul_i32 s{sT1}, s{sT0}, 7")
    g(f"s_sub_u32 s{sDT}, s{sY}, s{sT1}")
    g(f"s_lshl_b32 s{sT1}, s{sX}, 2")
    g(f"s_add_u32 s{sSTL}, s{sT1}, s{sT0}")
    g(f"s_mul_i32 s{sT2}, s{sX}, 3")
    g(f"s_add_u32 s{sT2}, s{sT2}, 4")
    g(f"s_cmp_lt_u32 s{sX}, 4")
    g(f"s_cselect_b32 s{sT1}, s{sT1}, s{sT2}")
    g(f"s_cselect_b32 s{sT3}, 28, 21")
    g(f"s_cselect_b32 s{sT2}, 3, 2")
    g(f"s_min_u32 s{sT2}, s{sT2}, s{sT0}")
    g(f"s_add_u32 s{sFT}, s{sT1}, s{sT2}")
    g(f"s_cmp_lt_u32 s{sY}, s{sT3}")
    g(f"s_cselect_b32 s{sR1}, 1, 0")
    g(f"s_lshl_b32 s{sWB}, s{sWV}, 15")
    g(f"s_mul_i32 s{sRA}, s{sWV}, {RA_W}")
    g(f"s_add_u32 s{sRA}, s{sRA}, {L_RA}")
    g("s_waitcnt lgkmcnt(0)")


def code_prefetch(g):
    g(f"s_getpc_b64 s[{sP0}:{sP0+1}]")
    g.label("L_pc_here")
    g(f"s_sub_u32 s{sP0}, s{sP0}, L_pc_here-{KNAME}")
    g(f"s_subb_u32 s{sP0+1}, s{sP0+1}, 0")
    g("v_lshlrev_b32 v250, 7, v0")
    g(f"v_min_u32 v250, L_code_end-{KNAME}-4, v250")
    g.vmem(f"global_load_dword v251, v250, s[{sP0}:{sP0+1}]")
    if OPT["cpf"] >= 2:
        g("v_add_u32 v250, 0x8000, v250") if False else None


def unpack_lo(g, dst, src): g(f"v_lshlrev_b32 v{dst}, 16, v{src}")
def unpack_hi(g, dst, src): g(f"v_and_b32 v{dst}, s{sMASK}, v{src}")


def flag_store(g, flagbase, s_index):
    g(f"s_lshl_b32 s{sT0}, s{s_index}, 2")
    g(f"s_add_u32 s{sT0}, s{sT0}, s{sWV}")
    g(f"s_mul_i32 s{sT0}, s{sT0}, {FSTR}")
    g(f"s_add_u32 s{sT0}, s{sT0}, {flagbase}")
    g(f"v_mov_b32 v2, s{sT0}")
    g(f"v_mov_b32 v3, s{sNONCE}")
    g(f"s_mov_b64 s[{sEX}:{sEX+1}], exec")
    g("s_mov_b64 exec, 1")
    g.vmem(f"buffer_store_dword v3, v2, {sr(sWS)}, 0 offen sc1")
    g(f"s_mov_b64 exec, s[{sEX}:{sEX+1}]")


def poll(g, vaddrs, vtmp):
    L = g.uid("L_poll"); Lok = g.uid("L_pollok")
    g.label(L)
    for i, va in enumerate(vaddrs):
        g(f"buffer_load_dword v{vtmp+i}, v{va}, {sr(sWS)}, 0 offen sc1")
    g("s_waitcnt vmcnt(0)")
    g(f"v_cmp_ne_u32 vcc, s{sNONCE}, v{vtmp}")
    for i in range(1, len(vaddrs)):
        g(f"v_cmp_ne_u32 s[{sEX}:{sEX+1}], s{sNONCE}, v{vtmp+i}")
        g("s_nop 1")
        g(f"s_or_b64 vcc, vcc, s[{sEX}:{sEX+1}]")
    g("s_nop 1")
    g(f"s_cbranch_vccz {Lok}")
    g(f"s_sub_u32 s{sBUD}, s{sBUD}, 1")
    g(f"s_cmp_gt_i32 s{sBUD}, 0")
    g(f"s_cbranch_scc1 {L}")
    g.label(Lok)


def gather_tagged(g, vaddr, soffs, imms, dst):
    L = g.uid("L_gath"); Lok = g.uid("L_gathok")
    g.label(L)
    for q in range(3):
        g(f"buffer_load_dwordx4 {r(dst + 4*q, 4)}, v{vaddr}, {sr(sWS)}, {soffs[q]} offen offset:{imms[q]} sc1")
    g("s_waitcnt vmcnt(0)")
    g(f"v_xor_b32 v{dst+3}, s{sNONCE}, v{dst+3}")
    g(f"v_xor_b32 v{dst+7}, s{sNONCE}, v{dst+7}")
    g(f"v_xor_b32 v{dst+11}, s{sNONCE}, v{dst+11}")
    g(f"v_or3_b32 v{dst+3}, v{dst+3}, v{dst+7}, v{dst+11}")
    g(f"v_cmp_ne_u32 vcc, 0, v{dst+3}")
    g("s_nop 1")
    g(f"s_cbranch_vccz {Lok}")
    g(f"s_sub_u32 s{sBUD}, s{sBUD}, 1")
    g(f"s_cmp_gt_i32 s{sBUD}, 0")
    g(f"s_cbranch_scc1 {L}")
    g.label(Lok)


vTR0, vTR1, vWS = 24, 25, 26

def w_params(which):
    return (sW1, F*2, 32, sFT) if which == 1 else (sW2, S*2, 28, sSTL)

def w_src(g, which):
    srd, pitch, nk, stile = w_params(which)
    g(f"v_lshrrev_b32 v{vWS}, 3, v1")
    g("v_and_b32 v30, 7, v1")
    g("v_lshrrev_b32 v31, 2, v1")
    g("v_and_b32 v31, 4, v31")
    g("v_xor_b32 v30, v30, v31")
    g(f"v_mul_u32_u24 v{vWS}, {pitch}, v{vWS}")
    g(f"v_lshl_add_u32 v{vWS}, v30, 4, v{vWS}")
    g(f"s_mul_i32 s{sT0}, s{sWV}, {16*nk*pitch}")
    g(f"s_lshl_b32 s{sT1}, s{stile}, 7")
    g(f"s_add_u32 s{sT0}, s{sT0}, s{sT1}")
    g(f"v_add_u32 v{vWS}, s{sT0}, v{vWS}")

def w_dma_block(g, which, kstep, half, slot, sbase=None, first=False):
    srd, pitch, nk, stile = w_params(which)
    sbase = sWB if sbase is None else sbase
    lds = slot*2048 + half*1024
    goff = (2*kstep + half)*8*pitch
    base = (lds // 4096) * 4096
    if goff < lds - base:
        base = lds
    key = (sbase, base)
    if first or getattr(g, "m0key", None) != key:
        g(f"s_add_u32 s{sM0}, s{sbase}, {base}")
        g(f"s_mov_b32 m0, s{sM0}")
        g.m0key = key
    imm = lds - base
    g(f"s_mov_b32 s{sOFF}, {goff - imm}")
    ntw = " nt" if OPT["nt0"] & 4 else ""
    return g.vmem(f"buffer_load_dwordx4 v{vWS}, {sr(srd)}, s{sOFF} offen offset:{imm}{ntw} lds")

def w_dma(g, which, k0, kn, slot0, sbase=None):
    last = None
    g.m0key = None
    for kk in range(kn):
        for half in range(2):
            last = w_dma_block(g, which, k0 + kk, half, slot0 + kk, sbase)
    return last

def tr_addr(g):
    g("v_lshrrev_b32 v3, 4, v1")
    g("v_bfe_u32 v4, v1, 2, 2")
    g("v_and_b32 v5, 3, v1")
    g("v_lshrrev_b32 v6, 1, v3")
    g("v_lshlrev_b32 v6, 10, v6")
    g("v_lshl_add_u32 v6, v4, 7, v6")
    g("v_and_b32 v3, 1, v3")
    g("v_lshl_add_u32 v6, v3, 5, v6")
    g("v_lshrrev_b32 v7, 1, v5")
    g("v_lshl_add_u32 v6, v7, 4, v6")
    g("v_and_b32 v7, 1, v5")
    g("v_lshl_add_u32 v6, v7, 3, v6")
    g("v_lshrrev_b32 v7, 1, v4")
    g(f"v_add_u32 v6, s{sWB}, v6")
    g(f"v_lshl_add_u32 v{vTR0}, v7, 6, v6")
    g("v_xor_b32 v7, 1, v7")
    g(f"v_lshl_add_u32 v{vTR1}, v7, 6, v6")

def w_tr(g, k0, kn, slot0=0, va=None):
    va = vTR0 if va is None else va
    for kk in range(kn):
        for nt in range(2):
            for jj in range(2):
                ab = 8*(k0 + kk) + 4*nt + 2*jj
                g.ds(f"ds_read_b64_tr_b16 {ar(ab,2)}, v{va+nt} offset:{(slot0 + kk)*2048 + jj*512}")


def l2_prefetch(g, which):
    srd, pitch = (sW1, F*2) if which == 1 else (sW2, S*2)
    rows = (S if which == 1 else F) // 16
    L = g.uid("L_nopf")
    g(f"s_cmp_lt_u32 s{sY}, 28")
    g(f"s_cbranch_scc1 {L}")
    if which == 1:
        g(f"s_lshl_b32 s{sT1}, s{sX}, 2")
        g(f"s_mul_i32 s{sT2}, s{sX}, 3")
        g(f"s_add_u32 s{sT2}, s{sT2}, 4")
        g(f"s_cmp_lt_u32 s{sX}, 4")
        g(f"s_cselect_b32 s{sT1}, s{sT1}, s{sT2}")
        g(f"s_lshl_b32 s{sT1}, s{sT1}, 7")
    else:
        g(f"s_lshl_b32 s{sT1}, s{sX}, 9")
    g(f"s_sub_u32 s{sT0}, s{sY}, 28")
    g(f"s_lshl_b32 s{sT0}, s{sT0}, 2")
    g(f"s_add_u32 s{sT0}, s{sT0}, s{sWV}")
    g(f"s_mul_i32 s{sT0}, s{sT0}, {rows*pitch}")
    g(f"s_add_u32 s{sT0}, s{sT0}, s{sT1}")
    g("v_lshrrev_b32 v2, 5, v1")
    g(f"v_mul_u32_u24 v2, {pitch}, v2")
    g("v_and_b32 v3, 31, v1")
    g("v_lshl_add_u32 v2, v3, 4, v2")
    g(f"v_add_u32 v2, s{sT0}, v2")
    for i in range(rows // 2):
        g(f"s_mov_b32 s{sOFF}, {2*i*pitch}")
        g(f"buffer_load_dwordx4 {ar(4*(i % 16), 4)}, v2, {sr(srd)}, s{sOFF} offen" + (" nt" if OPT["nt0"] & 8 else ""))
    g.label(L)


def mall_head(g):
    nrow = 16 * KA
    per_q = nrow * F * 2
    n = -(-per_q * 4 // (1024 * 1024))
    share = n * 1024
    wpq = -(-per_q // share)
    g(f"s_lshl_b32 s{sT0}, s2, 2")
    g(f"s_add_u32 s{sT0}, s{sT0}, s{sWV}")
    g(f"s_lshr_b32 s{sT1}, s{sT0}, 8")
    g(f"s_and_b32 s{sT0}, s{sT0}, 255")
    g(f"s_mul_i32 s{sT0}, s{sT0}, {share}")
    g(f"s_mul_i32 s{sT1}, s{sT1}, {512*F*2}")
    g(f"s_add_u32 s{sT0}, s{sT0}, s{sT1}")
    g(f"v_lshlrev_b32 v43, 4, v1")
    g(f"v_add_u32 v43, s{sT0}, v43")
    for i in range(n):
        g.vmem(f"buffer_load_dwordx4 {ar(224 + 4*i, 4)}, v43, {sr(sW1)}, 0 offen offset:{1024*i}")


def mall_prefetch(g, which, pieces=False, conv=False):
    va = 43 if which == 2 else 19
    srd = sW1 if which == 1 else sW2
    if which == 1 and not conv:
        n = 7
        g(f"s_lshl_b32 s{sT0}, s2, 2")
    else:
        n = 8
        g(f"s_lshl_b32 s{sT0}, s{sCT}, 2")
    g(f"s_add_u32 s{sT0}, s{sT0}, s{sWV}")
    g(f"s_mul_i32 s{sT0}, s{sT0}, {n*1024}")
    g(f"v_lshlrev_b32 v{va}, 4, v1")
    g(f"v_add_u32 v{va}, s{sT0}, v{va}")
    def one(i):
        def f():
            if i < 4:
                g.vmem(f"buffer_load_dwordx4 {ar(224 + 4*i, 4)}, v{va}, {sr(srd)}, 0 offen offset:{1024*i}")
            else:
                g(f"s_mov_b32 s{sOFF}, 4096")
                g.vmem(f"buffer_load_dwordx4 {ar(224 + 4*i, 4)}, v{va}, {sr(srd)}, s{sOFF} offen offset:{1024*(i-4)}")
        return f
    P = [one(i) for i in range(n)]
    if pieces:
        return P
    for f in P: f()


vKR, vVR, vQR, vSKR, vDR, vEP = 8, 20, 28, 36, 40, 41
vSW0, vSW1, vSWX = 44, 52, 60
vKF, vSKP = 68, 90
vKVF = 98
vKVP = 160
vQK = 232
vDK = 42
vTMP = 124
vSA = 156
vQF, vQN, vKVD = 176, 192, 208


def kvreg(c, i):
    return vKVP + 4*c + i if i < 3 else vKVP + 8 + c


def p0(g):
    g(f"s_mul_i32 s{sT0}, s{sJ}, {OCT}")
    g("v_lshlrev_b32 v2, 2, v0")
    g(f"v_add_u32 v3, s{sT0}, v2")
    g(f"v_mov_b32 v4, {BIG:#x}")
    g(f"v_cmp_gt_u32 vcc, 224, v0")
    g("v_lshlrev_b32 v7, 4, v0")
    g("s_nop 0")
    g("v_cndmask_b32 v3, v4, v3, vcc")
    g(f"v_add_u32 v5, {5*896}, v3")
    g(f"v_subrev_u32 v6, {3*896}, v3")
    g(f"s_cmp_eq_u32 s{sJ}, 0")
    g(f"s_cselect_b32 s{sT1}, 1, 0")
    g(f"v_mov_b32 v19, s{sT1}")
    g("v_cmp_eq_u32 vcc, 1, v19")
    g("v_mov_b32 v19, 0")
    g("s_nop 0")
    g("v_cndmask_b32 v6, v6, v4, vcc")
    nt = " nt" if OPT["nt0"] & 1 else ""
    nts = " nt" if OPT["nt0"] & 2 else ""
    if OPT["cpf"] == 2:
        code_prefetch(g)
    def rowload(dst, srd, rr):
        if rr < 0:
            return g.vmem(f"buffer_load_dword v{dst}, v6, {sr(srd)}, 0 offen offset:{(rr+3)*896}{nt}")
        if rr < 5:
            return g.vmem(f"buffer_load_dword v{dst}, v3, {sr(srd)}, 0 offen offset:{rr*896}{nt}")
        return g.vmem(f"buffer_load_dword v{dst}, v5, {sr(srd)}, 0 offen offset:{(rr-5)*896}{nt}")
    for rr in range(-3, 8):
        rowload(vKR + rr + 3, sK, rr)
    for rr in range(8):
        rowload(vVR + rr, sV, rr)
    g.vmem(f"buffer_load_dwordx4 {r(vSKR,4)}, v7, {sr(sSK)}, 0 offen")
    iv = g.vmem(f"buffer_load_dword v{vEP}, v19, {sr(sWS)}, 0 offen sc1")
    if OPT["cpf"] == 1:
        code_prefetch(g)
    if OPT["mall1"] == 1:
        mall_prefetch(g, 1)
    if OPT["mall1"] == 3:
        mall_head(g)
    g(f"s_lshl_b32 s{sT0}, s{sCT}, 13")
    g(f"v_add_u32 v{vSA}, s{sT0}, v7")
    g(f"v_subrev_u32 v{vSA+1}, 64, v{vSA}")
    g(f"v_subrev_u32 v{vSA+2}, 48, v{vSA}")
    g("v_cmp_le_u32 vcc, 4, v0")
    g(f"s_mov_b32 s{sC1}, 4096")
    g("s_nop 0")
    g(f"v_cndmask_b32 v{vSA+1}, v4, v{vSA+1}, vcc")
    g("v_cmp_le_u32 vcc, 3, v0")
    g("s_nop 1")
    g(f"v_cndmask_b32 v{vSA+2}, v4, v{vSA+2}, vcc")
    g("v_cmp_le_u32 vcc, 4, v1")
    g("v_mov_b32 v7, 0")
    g(f"v_mov_b32 v{vSA+3}, {4096 - 64}")
    g(f"v_cndmask_b32 v7, v7, v{vSA+3}, vcc")
    g(f"v_lshlrev_b32 v{vSA+3}, 4, v1")
    g(f"v_add3_u32 v7, v7, v{vSA+3}, s{sT0}")
    g(f"v_add_u32 v7, {16*256 - 64}, v7")
    g("v_cmp_gt_u32 vcc, 8, v1")
    g("s_nop 1")
    g(f"v_cndmask_b32 v{vSA+3}, v4, v7, vcc")
    def late_loads():
        g.vmem(f"buffer_load_dwordx4 {r(vSW0,4)}, v{vSA+1}, {sr(sSS)}, 0 offen{nts}")
        g.vmem(f"buffer_load_dwordx4 {r(vSW0+4,4)}, v{vSA+2}, {sr(sSS)}, 0 offen{nts}")
        g.vmem(f"buffer_load_dwordx4 {r(vSW1,4)}, v{vSA+1}, {sr(sSS)}, s{sC1} offen{nts}")
        g.vmem(f"buffer_load_dwordx4 {r(vSW1+4,4)}, v{vSA+2}, {sr(sSS)}, s{sC1} offen{nts}")
        g.vmem(f"buffer_load_dwordx4 {r(vSWX,4)}, v{vSA+3}, {sr(sSS)}, 0 offen{nts}")
        g.ssm_id = g.vmem(f"buffer_load_dwordx4 {r(vSWX+4,4)}, v{vSA+3}, {sr(sSS)}, 0 offen offset:16{nts}")
        for rr in range(8):
            rowload(vQK + rr, sQ, rr)
        g.q_id = g.vmem(f"buffer_load_dword v{vDK}, v2, {sr(sDD)}, 0 offen")

    if OPT["early"] == 1:
        late_loads()
    g.stamp("p0 loads issued")
    g.wait_vm(iv)
    g.stamp("p0 k,v landed")
    g(f"v_readfirstlane_b32 s{sNONCE}, v{vEP}")
    late_ops = []
    if OPT["early"] == 2:
        ids_ = []
        late_ops = g.record([late_loads], ids_)
        n_ssm = 6
        def fix_ids():
            g.ssm_id = ids_[5]; g.q_id = ids_[-1]
    for j in range(4):
        src0 = vSKR + (j >> 1); src1 = vSKR + 2 + (j >> 1)
        (unpack_hi if j & 1 else unpack_lo)(g, vSKP + 2*j, src0)
        (unpack_hi if j & 1 else unpack_lo)(g, vSKP + 2*j + 1, src1)
    g(f"s_add_u32 s{sNONCE}, s{sNONCE}, 0x9e3779b9")
    for i in range(11):
        unpack_lo(g, vKF + 2*i, vKR + i)
        unpack_hi(g, vKF + 2*i + 1, vKR + i)
        if i % 2 == 1: g.gap(late_ops, 2)
    for rr in range(8):
        g.gap(late_ops, 2)
        d = vKVF + 2*rr
        kf = lambda q: vKF + 2*(q + 3)
        g(f"v_pk_mul_f32 {r(d,2)}, {r(kf(rr),2)}, {r(vSKP,2)}")
        for j in (1, 2, 3):
            g(f"v_pk_fma_f32 {r(d,2)}, {r(kf(rr-j),2)}, {r(vSKP+2*j,2)}, {r(d,2)}")
        unpack_lo(g, vTMP, vVR + rr)
        unpack_hi(g, vTMP + 1, vVR + rr)
        g(f"v_pk_mul_f32 {r(d,2)}, {r(d,2)}, {r(vTMP,2)}")
    for c in range(2):
        for i in range(4):
            g(f"v_cvt_pk_bf16_f32 v{kvreg(c, i)}, v{vKVF + 2*(7-2*i) + c}, v{vKVF + 2*(6-2*i) + c}")
    for gq in range(3):
        g(f"v_mov_b32 v{vKVP + 4*gq + 3}, s{sNONCE}")
    g(f"v_mov_b32 v{vKVP + 10}, 0")
    g(f"s_mul_i32 s{sT0}, s{sJ}, {KSLAB}")
    g(f"s_add_u32 s{sT0}, s{sT0}, {KVT}")
    g("v_lshlrev_b32 v7, 4, v0")
    g(f"v_add_u32 v7, s{sT0}, v7")
    g("v_cmp_gt_u32 vcc, 224, v0")
    g(f"s_mov_b32 s{sT0}, {2*PLANE}")
    g("s_nop 0")
    g("v_cndmask_b32 v7, v4, v7, vcc")
    g.vmem(f"buffer_store_dwordx4 {r(vKVP,4)}, v7, {sr(sWS)}, 0 offen sc1")
    g.vmem(f"buffer_store_dwordx4 {r(vKVP+4,4)}, v7, {sr(sWS)}, 0 offen offset:{PLANE} sc1")
    ist = g.vmem(f"buffer_store_dwordx4 {r(vKVP+8,4)}, v7, {sr(sWS)}, s{sT0} offen sc1")
    g.stamp("p0 stores issued")
    if g.profile is True: ist = g.vm
    if OPT["early"] == 0:
        late_loads()
    g.gap(late_ops, 1000)
    if OPT["early"] == 2:
        fix_ids()
    if OPT["mall1"] == 2:
        mall_prefetch(g, 1)
    g.stamp("p0 published")


def toeplitz_pass(g, w, vaddr, ch_off):
    XE, XO, WO = 128, 132, 136
    for i in range(4):
        g(f"v_alignbit_b32 v{XE+i}, v{w+i+1}, v{w+i}, 16")
    for i in range(4):
        g(f"v_alignbit_b32 v{XO+i}, v{w+i+2}, v{w+i+1}, 16")
    for i in range(4):
        g(f"v_mov_b32 v{WO+i}, v{w+i+1}")
    src = {0: XE, 2: XO, 3: w+2, 1: WO}
    for p in (3, 0, 2, 1):
        g.ds(f"ds_write_b128 v{vaddr}, {r(src[p],4)} offset:{ch_off + p*TOEP_P}")


def rowstats(g, va, vb, mode):
    LS = L_STATS + (256 if mode == "ln2" else 0)
    for i in range(8):
        g(f"v_permlane32_swap_b32 v{va+i}, v{vb+i}")
    g.slot()
    for i in range(8):
        g(f"v_add_f32 v{va+i}, v{va+i}, v{vb+i}")
    g.slot()
    g("s_nop 0")
    for i in range(4):
        g(f"v_permlane16_swap_b32 v{va+i}, v{va+4+i}")
    for i in range(4):
        g(f"v_add_f32 v{va+i}, v{va+i}, v{va+4+i}")
    g.slot()
    for rot in (8, 4, 2, 1):
        for i in range(4):
            g(f"v_add_f32_dpp v{va+i}, v{va+i}, v{va+i} row_ror:{rot} row_mask:0xf bank_mask:0xf")
        if rot in (4, 1): g.slot()
    g("v_lshrrev_b32 v2, 4, v1")
    g("v_lshrrev_b32 v3, 1, v2")
    g("v_and_b32 v2, 1, v2")
    g("v_lshlrev_b32 v3, 7, v3")
    g("v_lshl_add_u32 v2, v2, 6, v3")
    g(f"s_lshl_b32 s{sT0}, s{sWV}, 2")
    g(f"s_add_u32 s{sT0}, s{sT0}, {LS}")
    g(f"v_add_u32 v2, s{sT0}, v2")
    g(f"s_mov_b64 s[{sEX}:{sEX+1}], exec")
    g(f"s_mov_b32 exec_lo, 0x00010001")
    g(f"s_mov_b32 exec_hi, 0x00010001")
    for i in range(4):
        g.ds(f"ds_write_b32 v2, v{va+i} offset:{16*i}")
    g(f"s_mov_b64 exec, s[{sEX}:{sEX+1}]")
    g("v_and_b32 v2, 7, v1")
    g("v_lshlrev_b32 v2, 4, v2")
    g(f"v_add_u32 v2, {LS}, v2")
    g(f"s_mov_b32 s{sT0}, 0x3b124925")
    g(f"s_mov_b32 s{sT1}, 0x3727c5ac")
    g.slot()
    g.wait_lg_all()
    g("s_barrier")
    g.ds(f"ds_read_b128 {r(va,4)}, v2")
    g.ds(f"ds_read_b128 {r(va+4,4)}, v2 offset:128")
    g.slot()
    g.wait_lg_all()
    g(f"v_add_f32 v{va}, v{va}, v{va+1}")
    g(f"v_add_f32 v{va+4}, v{va+4}, v{va+5}")
    g(f"v_add_f32 v{va+2}, v{va+2}, v{va+3}")
    g(f"v_add_f32 v{va+6}, v{va+6}, v{va+7}")
    g(f"v_add_f32 v{va}, v{va}, v{va+2}")
    g(f"v_add_f32 v{va+4}, v{va+4}, v{va+6}")
    g(f"v_mul_f32 v{va}, s{sT0}, v{va}")
    g(f"v_mul_f32 v{va+4}, s{sT0}, v{va+4}")
    g(f"v_fma_f32 v{va+4}, -v{va}, v{va}, v{va+4}")
    g(f"v_max_f32 v{va+4}, 0, v{va+4}")
    g(f"v_add_f32 v{va+5}, s{sT1}, v{va+4}")
    g(f"v_rsq_f32 v{va+5}, v{va+5}")
    if mode == "ln2":
        g("s_nop 0")
        g(f"v_mul_f32 v{va+6}, v{va+5}, v{va+5}")
        g(f"v_mul_f32 v{va+6}, v{va+6}, v{va+4}")
        g(f"v_add_f32 v{va+6}, s{sT1}, v{va+6}")
        g(f"v_rsq_f32 v{va+6}, v{va+6}")
        g("s_nop 0")
        g(f"v_mul_f32 v{va+5}, v{va+5}, v{va+6}")
    g("s_nop 1")
    for i in range(8):
        g(f"v_readlane_b32 s{sST+2*i}, v{va}, {i}")
        g(f"v_readlane_b32 s{sST+2*i+1}, v{va+5}, {i}")
        if i % 4 == 3: g.slot()
    g("s_nop 1")


def slot_a(g):
    Lskip = g.uid("L_noconv")
    g(f"s_cmp_ge_u32 s{sY}, 28")
    g(f"s_cbranch_scc1 {Lskip}")
    g.wait_vm(g.ssm_id)
    g("v_lshlrev_b32 v2, 4, v0")
    toeplitz_pass(g, vSW0, 2, L_TOEP)
    toeplitz_pass(g, vSW1, 2, L_TOEP + TOEP_CH)
    Lx = g.uid("L_noextra")
    g(f"s_cmp_eq_u32 s{sWV}, 0")
    g(f"s_cbranch_scc0 {Lx}")
    g("v_cmp_le_u32 vcc, 4, v1")
    g("v_mov_b32 v2, 0")
    g(f"v_mov_b32 v3, {TOEP_CH - 64}")
    g("v_cndmask_b32 v2, v2, v3, vcc")
    g("v_lshlrev_b32 v3, 4, v1")
    g("v_add_u32 v2, v2, v3")
    g(f"v_add_u32 v2, {16*256}, v2")
    g(f"s_mov_b64 s[{sEX}:{sEX+1}], exec")
    g("s_mov_b64 exec, 0xff")
    toeplitz_pass(g, vSWX, 2, L_TOEP)
    g(f"s_mov_b64 exec, s[{sEX}:{sEX+1}]")
    g.label(Lx)
    g("v_mov_b32 v128, 0\nv_mov_b32 v129, 0\nv_mov_b32 v130, 0\nv_mov_b32 v131, 0")
    g("v_lshlrev_b32 v2, 4, v0")
    g(f"v_add_u32 v2, {L_U}, v2")
    g("v_cmp_gt_u32 vcc, 160, v0")
    g(f"s_and_saveexec_b64 s[{sEX}:{sEX+1}], vcc")
    Lz = g.uid("L_noz")
    g(f"s_cbranch_execz {Lz}")
    g.ds(f"ds_write_b128 v2, v[128:131]")
    g.ds(f"ds_write_b128 v2, v[128:131] offset:{U_CH}")
    g.label(Lz)
    g(f"s_mov_b64 exec, s[{sEX}:{sEX+1}]")
    g.label(Lskip)
    g.stamp("slot A done")


def q_stats(g):
    for rr in range(8):
        unpack_lo(g, vQF + 2*rr, vQK + rr)
        unpack_hi(g, vQF + 2*rr + 1, vQK + rr)
        if rr % 4 == 3: g.slot()
    va, vb = 128, 136
    for rr in range(8):
        g(f"v_add_f32 v{va+rr}, v{vQF+2*rr}, v{vQF+2*rr+1}")
        g(f"v_mul_f32 v{vb+rr}, v{vQF+2*rr}, v{vQF+2*rr}")
        g(f"v_fmac_f32 v{vb+rr}, v{vQF+2*rr+1}, v{vQF+2*rr+1}")
        if rr % 3 == 2: g.slot()
    g("s_nop 1")
    rowstats(g, va, vb, "ln1")
    for rr in range(8):
        g(f"v_pk_add_f32 {r(vQN+2*rr,2)}, {r(vQF+2*rr,2)}, s[{sST+2*rr}:{sST+2*rr+1}] op_sel:[0,0] op_sel_hi:[1,0] neg_lo:[0,1] neg_hi:[0,1]")
        g(f"v_pk_mul_f32 {r(vQN+2*rr,2)}, {r(vQN+2*rr,2)}, s[{sST+2*rr}:{sST+2*rr+1}] op_sel:[0,1] op_sel_hi:[1,1]")
        if rr % 4 == 3: g.slot()
    unpack_lo(g, 128, vDK)
    unpack_hi(g, 129, vDK)
    for rr in range(8):
        i = (7 - rr) >> 1
        for c in range(2):
            (unpack_lo if rr & 1 else unpack_hi)(g, vKVD + 2*rr + c, kvreg(c, i))
        g(f"v_pk_mul_f32 {r(vKVD+2*rr,2)}, {r(vKVD+2*rr,2)}, v[128:129]")
        if rr % 3 == 2: g.slot()
    g.flush()


vACC0, vACC1, vFR = 64, 80, 96


def p1(g):
    Lskip = g.uid("L_noconv"); Lend = g.uid("L_convend")
    g(f"s_cmp_ge_u32 s{sY}, 28")
    g(f"s_cbranch_scc1 {Lskip}")
    if OPT["qpos"] == 2:
        g.wait_vm(g.q_id)
        q_stats(g)
    tr_addr(g)
    g(f"s_sub_u32 s{sT0}, s{sRA}, s{sWB}")
    g(f"v_add_u32 v28, s{sT0}, v{vTR0}")
    g(f"v_add_u32 v29, s{sT0}, v{vTR1}")
    g(f"s_lshl_b32 s{sT1}, s{sCT}, 4")
    g(f"s_add_u32 s{sT1}, s{sT1}, {KVT}")
    g(f"v_mul_u32_u24 v3, {KSLAB}, v0")
    g(f"v_add_u32 v3, s{sT1}, v3")
    g("v_lshrrev_b32 v4, 2, v0")
    g("v_mul_u32_u24 v4, 80, v4")
    g("v_and_b32 v5, 3, v0")
    g("v_lshl_add_u32 v4, v5, 4, v4")
    g(f"v_add_u32 v4, {L_U + 32*80}, v4")
    g("v_and_b32 v6, 31, v1")
    g("v_lshrrev_b32 v7, 5, v1")
    g(f"s_lshr_b32 s{sT4}, s{sWV}, 1")
    g(f"s_and_b32 s{sT5}, s{sWV}, 1")
    g("v_and_b32 v17, 3, v6")
    g(f"v_mul_u32_u24 v16, {TOEP_P}, v17")
    g("v_lshrrev_b32 v17, 2, v6")
    g("v_lshl_add_u32 v16, v17, 3, v16")
    g("v_lshlrev_b32 v17, 4, v7")
    g("v_sub_u32 v16, v16, v17")
    g(f"s_mul_i32 s{sT2}, s{sT4}, {TOEP_CH}")
    g(f"s_lshl_b32 s{sT3}, s{sT5}, 5")
    g(f"s_sub_u32 s{sT2}, s{sT2}, s{sT3}")
    g(f"s_add_u32 s{sT2}, s{sT2}, {L_TOEP + 48}")
    g(f"v_add_u32 v16, s{sT2}, v16")
    g("v_mul_u32_u24 v18, 80, v6")
    g("v_lshl_add_u32 v18, v7, 4, v18")
    g(f"s_mul_i32 s{sT2}, s{sT4}, {U_CH}")
    g(f"s_add_u32 s{sT2}, s{sT2}, s{sT3}")
    g(f"s_add_u32 s{sT2}, s{sT2}, {L_U + 80}")
    g(f"v_add_u32 v18, s{sT2}, v18")
    w_src(g, 1)
    g(f"s_mov_b32 s{sC1}, {2*PLANE}")
    gather_tagged(g, 3, ["0", "0", f"s{sC1}"], [0, PLANE, 0], 44)
    g.stamp("p1 kv landed")
    g("v_mov_b32 v47, v52")
    g("v_mov_b32 v51, v53")
    g.ds(f"ds_write_b128 v4, v[44:47]")
    g.ds(f"ds_write_b128 v4, v[48:51] offset:{U_CH}")
    if OPT["qpos"] == 1:
        q_stats(g)
    g.wait_lg_all()
    g("s_barrier")
    g.stamp("p1 start mfma")
    DEPTH = 2
    def rd(m, which):
        b = vFR + 16 * (m % (DEPTH + 1))
        if which == 0:
            g.ds(f"ds_read_b64 {r(b,2)}, v16 offset:{64*m}")
            return g.ds(f"ds_read_b64 {r(b+2,2)}, v16 offset:{64*m + 8}")
        if which == 1: return g.ds(f"ds_read_b128 {r(b+8,4)}, v18 offset:{(31-m)*80}")
        if which == 2: return g.ds(f"ds_read_b128 {r(b+12,4)}, v18 offset:{(63-m)*80}")
        g.ds(f"ds_read_b64 {r(b+4,2)}, v16 offset:{64*(m+32)}")
        return g.ds(f"ds_read_b64 {r(b+6,2)}, v16 offset:{64*(m+32) + 8}")
    last = {}
    for m in range(DEPTH):
        for w in range(4):
            last[m] = rd(m, w)
    g.m0key = None
    dma_a = None
    nda = 0
    pf1 = mall_prefetch(g, 1, pieces=True, conv=True) if OPT["mall1"] == 5 else []
    pf = mall_prefetch(g, 2, pieces=True) if OPT["mall2"] else []
    d0 = OPT["dma_from"]
    for m in range(32):
        g.wait_lg(last[m])
        b = vFR + 16 * (m % (DEPTH + 1))
        c0 = "0" if m == 0 else r(vACC0, 16)
        c1 = "0" if m == 0 else r(vACC1, 16)
        nx = m + DEPTH
        g(f"v_mfma_f32_32x32x16_bf16 {r(vACC0,16)}, {r(b,4)}, {r(b+8,4)}, {c0}")
        if nx < 32:
            rd(nx, 0); rd(nx, 1)
        g(f"v_mfma_f32_32x32x16_bf16 {r(vACC1,16)}, {r(b,4)}, {r(b+12,4)}, {c1}")
        if nx < 32:
            rd(nx, 2); last[nx] = rd(nx, 3)
        g(f"v_mfma_f32_32x32x16_bf16 {r(vACC1,16)}, {r(b+4,4)}, {r(b+8,4)}, {r(vACC1,16)}")
        if pf1:
            pf1.pop(0)()
        elif pf and m >= OPT["pf_at"]:
            pf.pop(0)()
        while m >= d0 and nda < 2 * KA and nda * (32 - d0) <= (m - d0) * 2 * KA:
            dma_a = w_dma_block(g, 1, nda >> 1, nda & 1, nda >> 1, sbase=sRA)
            nda += 1
    assert nda == 2 * KA and not pf1
    assert not pf
    g.stamp("p1 mfma done")
    g("s_barrier")
    g("v_lshlrev_b32 v4, 4, v1")
    g(f"s_lshl_b32 s{sT2}, s{sWV}, 11")
    g(f"v_add_u32 v5, s{sT2}, v4")
    g(f"s_lshl_b32 s{sT2}, s{sWV}, 13")
    g(f"v_add_u32 v6, s{sT2}, v4")
    g(f"s_mul_i32 s{sT2}, s{sCT}, {YSLAB}")
    g(f"s_lshl_b32 s{sT3}, s{sWV}, 10")
    g(f"s_add_u32 s{sT2}, s{sT2}, s{sT3}")
    g(f"s_add_u32 s{sT2}, s{sT2}, {YT}")
    g(f"v_add_u32 v7, s{sT2}, v4")
    g(f"s_mov_b32 s{sT2}, 4096")
    g(f"s_mov_b32 s{sT3}, 8192")
    g.nop(3)
    for ow in range(4):
        acc = vACC0 if ow < 2 else vACC1
        for hf in range(2):
            g.ds(f"ds_write_b128 v5, {r(acc + 8*(ow & 1) + 4*hf, 4)} offset:{ow*8192 + hf*1024}")
    g.wait_lg_all()
    g("s_barrier")
    for src in range(4):
        for hf in range(2):
            g.ds(f"ds_read_b128 {r(vFR + 8*src + 4*hf, 4)}, v6 offset:{src*2048 + hf*1024}")
    g.wait_lg_all()
    for i in range(0, 8, 2):
        g(f"v_pk_add_f32 {r(vFR+i,2)}, {r(vFR+i,2)}, {r(vFR+8+i,2)}")
        g(f"v_pk_add_f32 {r(vFR+16+i,2)}, {r(vFR+16+i,2)}, {r(vFR+24+i,2)}")
    Gb = vFR + 32
    for c in range(2):
        for i in range(4):
            g(f"v_cvt_pk_bf16_f32 v{Gb+4*c+i}, v{vFR+16*c+2*i}, v{vFR+16*c+2*i+1}")
    g(f"v_mov_b32 v{Gb+10}, 0")
    g(f"v_mov_b32 v{Gb+11}, s{sNONCE}")
    for c in range(2):
        g(f"v_permlane32_swap_b32 v{Gb+4*c}, v{Gb+4*c+2}")
        g(f"v_permlane32_swap_b32 v{Gb+4*c+1}, v{Gb+4*c+3}")
    g(f"v_mov_b32 v{Gb+8}, v{Gb+3}")
    g(f"v_mov_b32 v{Gb+9}, v{Gb+7}")
    g(f"v_mov_b32 v{Gb+3}, s{sNONCE}")
    g(f"v_mov_b32 v{Gb+7}, s{sNONCE}")
    g.vmem(f"buffer_store_dwordx4 {r(Gb+8,4)}, v7, {sr(sWS)}, s{sT3} offen sc1")
    g.vmem(f"buffer_store_dwordx4 {r(Gb,4)}, v7, {sr(sWS)}, 0 offen sc1")
    ist = g.vmem(f"buffer_store_dwordx4 {r(Gb+4,4)}, v7, {sr(sWS)}, s{sT2} offen sc1")
    g.stamp("p1 stores issued")
    if g.profile is True: ist = g.vm
    g.wait_vm(dma_a)
    w_tr(g, 0, KA, 0, va=28)
    g.wait_lg_all()
    g("s_barrier")
    blocks = [(KA + (i >> 1), i & 1, i >> 1) for i in range(32)]
    g.m0key = None
    for (k, hf, sl) in blocks:
        g.pending.append(lambda k=k, hf=hf, sl=sl: w_dma_block(g, 1, k, hf, sl))
    if OPT["qpos"] == 0:
        q_stats(g)
    g.flush()
    g.stamp("p1 W staged")
    g(f"s_branch {Lend}")
    g.label(Lskip)
    if OPT["pf1"] == 2:
        l2_prefetch(g, 1)
        g(f"s_waitcnt vmcnt({min(63, (S // 32))})")
    else:
        g.wait_vm_all()
    q_stats(g)
    if OPT["pf1"] == 1:
        l2_prefetch(g, 1)
    if OPT["pf2"] == 2:
        l2_prefetch(g, 2)
    g.label(Lend)
    g.stamp("q stats done")


def p2(g):
    g(f"s_lshr_b32 s{sT0}, s{sJ}, 7")
    g(f"s_lshl_b32 s{sT0}, s{sT0}, 7")
    g(f"s_and_b32 s{sT1}, s{sJ}, 3")
    g(f"s_lshl_b32 s{sT1}, s{sT1}, 5")
    g(f"s_add_u32 s{sT0}, s{sT0}, s{sT1}")
    g(f"s_bfe_u32 s{sT1}, s{sJ}, {(5 << 16) | 2}")
    g(f"s_add_u32 s{sT0}, s{sT0}, s{sT1}")
    g(f"s_lshl_b32 s{sT0}, s{sT0}, 4")
    g(f"s_add_u32 s{sT4}, s{sT0}, {YT}")
    g(f"s_add_u32 s{sT5}, s{sT4}, 4096")
    g(f"s_add_u32 s{sC2}, s{sT4}, 8192")
    g(f"v_mov_b32 v6, {BIG:#x}")
    g(f"v_mul_u32_u24 v19, {YSLAB}, v0")
    g("v_cmp_gt_u32 vcc, 224, v0")
    g(f"s_mul_i32 s{sT1}, s{sJ}, {OCT}")
    g("v_lshlrev_b32 v5, 4, v0")
    g(f"v_add_u32 v5, s{sT1}, v5")
    g("v_cndmask_b32 v19, v6, v19, vcc")
    g("v_cndmask_b32 v5, v6, v5, vcc")
    g("v_lshlrev_b32 v27, 2, v0")
    g(f"v_add_u32 v27, s{sT1}, v27")
    g("v_cndmask_b32 v27, v6, v27, vcc")
    g(f"v_add_u32 v28, {4*896}, v27")
    g("v_mov_b32 v29, v5")
    tr_addr(g)
    for i in range(12):
        g(f"v_mov_b32 v{44+i}, 0")
    g(f"s_cmp_eq_u32 s{sWV}, 3")
    g(f"s_cselect_b32 s{sT0}, 0, -1")
    g(f"s_mov_b64 s[{sEX+0}:{sEX+1}], exec")
    g(f"s_mov_b32 exec_hi, s{sT0}")
    gather_tagged(g, 19, [f"s{sT4}", f"s{sT5}", f"s{sC2}"], [0, 0, 0], 44)
    g("s_mov_b64 exec, -1")
    g.stamp("p2 y landed")
    vH = 32
    for rr in range(8):
        for c in range(2):
            i = rr >> 1
            (unpack_hi if rr & 1 else unpack_lo)(g, vH + 2*rr + c, 44 + 4*c + i if i < 3 else 52 + c)
    for rr in range(8):
        g(f"v_pk_add_f32 {r(vH+2*rr,2)}, {r(vH+2*rr,2)}, {r(vKVD+2*rr,2)}")
    for rr in range(8):
        g(f"v_pk_fma_f32 {r(vH+2*rr,2)}, {r(vQN+2*rr,2)}, {r(vH+2*rr,2)}, {r(vQF+2*rr,2)}")
    va, vb = 64, 72
    for rr in range(8):
        g(f"v_add_f32 v{va+rr}, v{vH+2*rr}, v{vH+2*rr+1}")
        g(f"v_mul_f32 v{vb+rr}, v{vH+2*rr}, v{vH+2*rr}")
        g(f"v_fmac_f32 v{vb+rr}, v{vH+2*rr+1}, v{vH+2*rr+1}")
    for rr in range(8):
        g(f"v_cvt_pk_bf16_f32 v{16+rr}, v{vH+2*rr}, v{vH+2*rr+1}")
    g(f"s_mov_b32 s{sT2}, {HH}")
    for rr in range(8):
        if rr < 4:
            g.vmem(f"buffer_store_dword v{16+rr}, v27, {sr(sWS)}, s{sT2} offen offset:{rr*896} sc1")
        else:
            g.vmem(f"buffer_store_dword v{16+rr}, v28, {sr(sWS)}, s{sT2} offen offset:{(rr-4)*896} sc1")
    rowstats(g, va, vb, "ln2")
    for rr in range(8):
        g(f"v_pk_add_f32 {r(vH+2*rr,2)}, {r(vH+2*rr,2)}, s[{sST+2*rr}:{sST+2*rr+1}] op_sel:[0,0] op_sel_hi:[1,0] neg_lo:[0,1] neg_hi:[0,1]")
        g(f"v_pk_mul_f32 {r(vH+2*rr,2)}, {r(vH+2*rr,2)}, s[{sST+2*rr}:{sST+2*rr+1}] op_sel:[0,1] op_sel_hi:[1,1]")
    for c in range(2):
        for i in range(4):
            g(f"v_cvt_pk_bf16_f32 v{8+4*c+i}, v{vH+2*(2*i)+c}, v{vH+2*(2*i+1)+c}")
    g(f"s_mov_b32 s{sT2}, {HNT}")
    g.vmem(f"buffer_store_dwordx4 v[8:11], v29, {sr(sWS)}, s{sT2} offen sc1")
    ist = g.vmem(f"buffer_store_dwordx4 v[12:15], v29, {sr(sWS)}, s{sT2} offen offset:{PLANE} sc1")
    g.stamp("p2 stores issued")
    if g.profile is True: ist = g.vm
    Ln = g.uid("L_noconv"); Lj = g.uid("L_join")
    g(f"s_cmp_ge_u32 s{sY}, 28")
    g(f"s_cbranch_scc1 {Ln}")
    w_tr(g, KA, 16, 0)
    g.wait_lg_all()
    nd = OPT["drain_dma"]
    NC = 32 - KA - 16
    g.m0key = None
    for i in range(2*NC):
        w_dma_block(g, 1, KA + 16 + (i >> 1), i & 1, i >> 1)
    w_src(g, 2)
    blocks = [(i >> 1, i & 1, NC + (i >> 1)) for i in range(2*(16 - NC))]
    nd2 = max(0, nd - 2*NC)
    g.m0key = None
    for (k, hf, sl) in blocks[:nd2]:
        w_dma_block(g, 2, k, hf, sl)
    g.wait_vm(ist)
    flag_store(g, FLAG2, sJ)
    g.stamp("p2 flag out")
    for (k, hf, sl) in blocks[nd2:]:
        w_dma_block(g, 2, k, hf, sl)
    g(f"s_branch {Lj}")
    g.label(Ln)
    g.wait_vm_all()
    flag_store(g, FLAG2, sJ)
    if OPT["pf2"] == 1:
        l2_prefetch(g, 2)
    g.label(Lj)
    g.stamp("p2 published")


vACC = 96
vXR = 160
NSLOT_MAX = 24


def gemm(g, which):
    NSLOT = OPT["nslot"]
    nk = 32 if which == 1 else 28
    NC = 32 - KA - 16
    KB = 16 - NC
    R2 = min(16, 28 - KB)
    R3 = 28 - KB - R2
    Lskip = g.uid("L_nogemm")
    g.sreg = (30, 27)
    if which == 1:
        g(f"s_cmp_eq_u32 s{sR1}, 0")
        g(f"s_cbranch_scc1 {Lskip}")
    else:
        g(f"s_cmp_ge_u32 s{sY}, 28")
        g(f"s_cbranch_scc1 {Lskip}")
        Lh = g.uid("L_have")
        g(f"s_cmp_eq_u32 s{sR1}, 1")
        g(f"s_cbranch_scc1 {Lh}")
        g.wait_vm_all()
        w_tr(g, 0, KB, NC)
        g.wait_lg_all()
        w_dma(g, 2, KB, R2, 0)
        g.label(Lh)
    if which == 1:
        g(f"s_lshl_b32 s{sT0}, s{sWV}, 6")
        g(f"v_add_u32 v2, s{sT0}, v1")
        g(f"v_mul_u32_u24 v2, {4*FSTR}, v2")
        g(f"s_lshr_b32 s{sT0}, s{sDT}, 1")
        g(f"s_mul_i32 s{sT0}, s{sT0}, {FSTR}")
        g(f"s_add_u32 s{sT0}, s{sT0}, {FLAG2}")
        g(f"v_add_u32 v2, s{sT0}, v2")
    else:
        g("v_min_u32 v3, 27, v1")
        g("v_lshrrev_b32 v2, 2, v3")
        g(f"s_mul_i32 s{sT0}, s{sWV}, 7")
        g(f"v_add_u32 v2, s{sT0}, v2")
        g("v_mul_u32_u24 v2, 7, v2")
        g(f"v_add_u32 v2, s{sDT}, v2")
        g("v_lshlrev_b32 v2, 2, v2")
        g("v_and_b32 v3, 3, v3")
        g("v_add_u32 v2, v2, v3")
        g(f"v_mul_u32_u24 v2, {FSTR}, v2")
        g(f"v_add_u32 v2, {FLAG3}, v2")
    g("v_and_b32 v6, 31, v1")
    g("v_lshrrev_b32 v7, 5, v1")
    g(f"v_mul_u32_u24 v3, {OCT}, v7")
    g("v_lshl_add_u32 v3, v6, 4, v3")
    g(f"s_mul_i32 s{sT0}, s{sWV}, {2*nk*OCT}")
    g(f"s_lshl_b32 s{sT1}, s{sDT}, 9")
    g(f"s_add_u32 s{sT0}, s{sT0}, s{sT1}")
    g(f"s_add_u32 s{sT0}, s{sT0}, {HNT if which == 1 else UT}")
    g(f"v_add_u32 v3, s{sT0}, v3")
    u_nt = sT2; u_rh = sT3
    g(f"s_lshr_b32 s{u_nt}, s{sWV}, 1")
    g(f"s_and_b32 s{u_rh}, s{sWV}, 1")
    vBI = 16
    if which == 1:
        g(f"s_lshl_b32 s{sT0}, s{sFT}, 6")
        g(f"s_lshl_b32 s{sT1}, s{u_nt}, 5")
        g(f"s_add_u32 s{sT0}, s{sT0}, s{sT1}")
        g(f"s_lshl_b32 s{sT1}, s{u_rh}, 4")
        g(f"s_add_u32 s{sT0}, s{sT0}, s{sT1}")
        g(f"s_lshl_b32 s{sT0}, s{sT0}, 1")
        g("v_lshlrev_b32 v4, 3, v7")
        g(f"v_add_u32 v4, s{sT0}, v4")
        g.vmem(f"buffer_load_dwordx2 v[10:11], v4, {sr(sB1)}, 0 offen")
        g.vmem(f"buffer_load_dwordx2 v[12:13], v4, {sr(sB1)}, 0 offen offset:16")
        g(f"s_lshl_b32 s{sT0}, s{sFT}, 3")
        g(f"s_lshl_b32 s{sT1}, s{u_nt}, 2")
        g(f"s_add_u32 s{sT0}, s{sT0}, s{sT1}")
        g(f"s_lshl_b32 s{sT1}, s{u_rh}, 1")
        g(f"s_add_u32 s{sT0}, s{sT0}, s{sT1}")
        g(f"v_add_u32 v14, s{sT0}, v7")
        g(f"v_mul_u32_u24 v14, {OCT}, v14")
        g("v_lshl_add_u32 v14, v6, 4, v14")
        g(f"s_lshl_b32 s{sT0}, s{sDT}, 9")
        g(f"s_add_u32 s{sT0}, s{sT0}, {UT}")
        g(f"v_add_u32 v14, s{sT0}, v14")
    else:
        g(f"s_lshl_b32 s{sT0}, s{sSTL}, 6")
        g(f"s_lshl_b32 s{sT1}, s{u_nt}, 5")
        g(f"s_add_u32 s{sT0}, s{sT0}, s{sT1}")
        g(f"v_add_u32 v4, s{sT0}, v6")
        g("v_lshlrev_b32 v5, 1, v4")
        g.vmem(f"buffer_load_ushort v10, v5, {sr(sB2)}, 0 offen")
        g("v_mul_u32_u24 v14, 896, v4")
        g(f"s_lshl_b32 s{sT0}, s{sDT}, 7")
        g(f"s_lshl_b32 s{sT1}, s{u_rh}, 6")
        g(f"s_add_u32 s{sT0}, s{sT0}, s{sT1}")
        g(f"v_add_u32 v14, s{sT0}, v14")
        g("v_lshl_add_u32 v14, v7, 4, v14")
    g("v_lshlrev_b32 v4, 4, v1")
    g(f"v_add_u32 v4, {L_RED}, v4")
    g(f"s_lshl_b32 s{sT0}, s{sWV}, 11")
    g(f"v_add_u32 v5, s{sT0}, v4")
    g(f"s_lshl_b32 s{sT0}, s{sWV}, 13")
    g(f"v_add_u32 v4, s{sT0}, v4")
    poll(g, [2], 8)
    g.stamp(f"g{which} flags seen")
    seq = [(pp, k) for pp in range(2) for k in range(nk)]
    ids = {}
    def xissue(n):
        pp, k = seq[n]
        g(f"s_mov_b32 s{sOFF}, {k * 2 * OCT}")
        ids[n] = g.vmem(f"buffer_load_dwordx4 {r(vXR + 4*(n % NSLOT), 4)}, v3, {sr(sWS)}, s{sOFF} offen offset:{PLANE*pp} sc1")
    for n in range(NSLOT):
        xissue(n)
    vHR = 72
    if which == 2:
        g(f"s_mov_b32 s{sT0}, {HH}")
        for q2 in range(2):
            g.vmem(f"buffer_load_dwordx4 {r(vHR + 4*q2, 4)}, v14, {sr(sWS)}, s{sT0} offen offset:{32*q2} sc1")
    r3 = None
    if which == 2:
        w_tr(g, KB, R2, 0)
        if R3:
            g.wait_lg_all()
            r3 = w_dma(g, 2, KB + R2, R3, 0)
    else:
        w_tr(g, 32 - NC, NC, 0)
    if which == 1:
        for i in range(4):
            (unpack_hi if i & 1 else unpack_lo)(g, vBI + i, 10 + (i >> 1))
            (unpack_hi if i & 1 else unpack_lo)(g, vBI + 4 + i, 12 + (i >> 1))
    else:
        unpack_lo(g, vBI, 10)
    g.wait_lg_all()

    def reduce_pieces(pp, T):
        acc = lambda nt: vACC + 32*pp + 16*nt
        P = []
        def wr(u0):
            def f():
                if u0 == 0:
                    g("s_barrier")
                for u in (u0, u0 + 1):
                    nt, rh = u >> 1, u & 1
                    for hf in range(2):
                        g.ds(f"ds_write_b128 v5, {r(acc(nt) + 8*rh + 4*hf, 4)} offset:{u*8192 + hf*1024}")
            return f
        P.append(wr(0)); P.append(wr(2))
        def sync():
            g.wait_lg_all()
            g("s_barrier")
            for src in range(4):
                for hf in range(2):
                    g.ds(f"ds_read_b128 {r(32 + 8*src + 4*hf, 4)}, v4 offset:{src*2048 + hf*1024}")
        P.append(sync)
        def add1():
            g.wait_lg_all()
            for i in range(0, 8, 2):
                g(f"v_pk_add_f32 {r(32+i,2)}, {r(32+i,2)}, {r(40+i,2)}")
                g(f"v_pk_add_f32 {r(48+i,2)}, {r(48+i,2)}, {r(56+i,2)}")
        P.append(add1)
        def add2():
            for i in range(0, 8, 2):
                g(f"v_pk_add_f32 {r(T+i,2)}, {r(32+i,2)}, {r(48+i,2)}")
        P.append(add2)
        return P

    def gelu_pieces(pp, out):
        T = 32; U = T + 8; Pk = T + 16
        P = []
        def a():
            for i in range(0, 8, 2):
                g(f"v_pk_add_f32 {r(T+i,2)}, {r(T+i,2)}, {r(vBI+i,2)}")
            g(f"s_mov_b32 s{sC1}, 0xc0135761")
            g(f"s_mov_b32 s{sC2}, 0xbdd2d3e8")
            g(f"v_mov_b32 v{T+16}, s{sC1}")
            for i in range(0, 8, 2):
                g(f"v_pk_mul_f32 {r(U+i,2)}, {r(T+i,2)}, {r(T+i,2)}")
        def b():
            for i in range(8):
                g(f"v_fma_f32 v{U+i}, v{U+i}, s{sC2}, v{T+16}")
            for i in range(0, 8, 2):
                g(f"v_pk_mul_f32 {r(U+i,2)}, {r(U+i,2)}, {r(T+i,2)}")
        def c(lo):
            def f():
                for i in range(lo, lo + 4):
                    g(f"v_exp_f32 v{U+i}, v{U+i}")
            return f
        def d():
            for i in range(8):
                g(f"v_add_f32 v{U+i}, 1.0, v{U+i}")
        def e(lo):
            def f():
                for i in range(lo, lo + 4):
                    g(f"v_rcp_f32 v{U+i}, v{U+i}")
            return f
        def h():
            g("s_nop 0")
            for i in range(0, 8, 2):
                g(f"v_pk_mul_f32 {r(T+i,2)}, {r(T+i,2)}, {r(U+i,2)}")
            for i in range(4):
                g(f"v_cvt_pk_bf16_f32 v{Pk+i}, v{T+2*i}, v{T+2*i+1}")
        def st():
            g("s_nop 1")
            g(f"v_permlane32_swap_b32 v{Pk}, v{Pk+2}")
            g(f"v_permlane32_swap_b32 v{Pk+1}, v{Pk+3}")
            out.append(g.vmem(f"buffer_store_dwordx4 {r(Pk,4)}, v14, {sr(sWS)}, 0 offen offset:{PLANE*pp} sc1"))
        return [a, b, c(0), c(4), d, e(0), e(4), h, st]

    n = 0
    sts = []
    ops = []
    for pp in range(2):
        for k in range(nk):
            if r3 is not None and pp == 0 and k == KB + R2 - 3:
                g.wait_vm(r3)
                w_tr(g, KB + R2, R3, 0)
            if r3 is not None and pp == 0 and k == KB + R2:
                g.wait_lg_all()
            g.wait_vm(ids[n])
            x = r(vXR + 4*(n % NSLOT), 4)
            for nt in range(2):
                acc = r(vACC + 32*pp + 16*nt, 16)
                c = "0" if k == 0 else acc
                w = ar(8*k + 4*nt, 4)
                if which == 1:
                    g(f"v_mfma_f32_32x32x16_bf16 {acc}, {w}, {x}, {c}")
                else:
                    g(f"v_mfma_f32_32x32x16_bf16 {acc}, {x}, {w}, {c}")
                if OPT["xpos"] == 1 and nt == 1 and n + NSLOT < len(seq):
                    xissue(n + NSLOT)
                if OPT["xpos"] == 0 and nt == 0 and n >= 1 and n - 1 + NSLOT < len(seq):
                    xissue(n - 1 + NSLOT)
                if pp == 1 and k >= 2:
                    g.gap(ops, OPT["gap"])
            n += 1
        g.stamp(f"g{which} pass {pp} mfma done")
        g.gap(ops, 1000)
        if pp == 0:
            fns = reduce_pieces(0, 32 if which == 1 else 64)
            if which == 1:
                fns += gelu_pieces(0, [])
            ops = g.record(fns, sts)
        else:
            g.nop(12)
            for f in reduce_pieces(1, 32): f()
            if which == 1:
                for f in gelu_pieces(1, sts): f()
    if which == 1:
        ist = sts[-1]
        g.stamp("g1 u stores issued")
        if g.profile is True: ist = g.vm
    if which == 1:
        g(f"s_mul_i32 s{sT4}, s{sFT}, 7")
        g(f"s_add_u32 s{sT4}, s{sT4}, s{sDT}")
        w_tr(g, 0, KB, NC)
        g.wait_lg_all()
        nd = OPT["drain_dma3"]
        blocks = [(KB + (i >> 1), i & 1, i >> 1) for i in range(2*R2)]
        g.m0key = None
        for (k, hf, sl) in blocks[:nd]:
            w_dma_block(g, 2, k, hf, sl)
        g.wait_vm(ist)
        flag_store(g, FLAG3, sT4)
        g.stamp("g1 flag out")
        for (k, hf, sl) in blocks[nd:]:
            w_dma_block(g, 2, k, hf, sl)
    else:
        for i in range(8):
            unpack_lo(g, 40 + i, vHR + i)
            unpack_hi(g, 48 + i, vHR + i)
        for i in range(8):
            g(f"v_add_f32 v{64+i}, v{64+i}, v{vBI}")
            g(f"v_add_f32 v{32+i}, v{32+i}, v{vBI}")
        for i in range(0, 8, 2):
            g(f"v_pk_add_f32 {r(64+i,2)}, {r(64+i,2)}, {r(40+i,2)}")
            g(f"v_pk_add_f32 {r(32+i,2)}, {r(32+i,2)}, {r(48+i,2)}")
        for i in range(8):
            g(f"v_cvt_pk_bf16_f32 v{56+i}, v{64+i}, v{32+i}")
        for q2 in range(2):
            g.vmem(f"buffer_store_dwordx4 {r(56+4*q2,4)}, v14, {sr(sOUT)}, 0 offen offset:{32*q2}")
    g.stamp(f"g{which} done")
    g.label(Lskip)


def finish(g):
    g("s_cmp_eq_u32 s2, 0")
    g("s_cbranch_scc0 L_exit")
    g(f"s_cmp_eq_u32 s{sWV}, 0")
    g("s_cbranch_scc0 L_exit")
    g("v_mov_b32 v2, 0")
    g(f"v_mov_b32 v3, s{sNONCE}")
    g("s_mov_b64 exec, 1")
    g(f"buffer_store_dword v3, v2, {sr(sWS)}, 0 offen sc1")


def build(profile=False, stop_after=9):
    g = G(profile)
    g(f"; @launch grid=({NWG},1,1) block=(256,1,1) lds={LDS_BYTES}")
    g('.amdgcn_target "amdgcn-amd-amdhsa--gfx950"')
    g(".text")
    g(f".globl {KNAME}")
    g(".p2align 8")
    g(f".type {KNAME},@function")
    g(f"{KNAME}:")
    prologue(g)
    g.stamp("start")
    p0(g)
    slot_a(g)
    p1(g)
    p2(g)
    if stop_after >= 3: gemm(g, 1)
    if stop_after >= 4: gemm(g, 2)
    g.sreg = (30, 27)
    g.stamp("end")
    finish(g)
    g("L_exit:")
    g("s_endpgm")
    g("L_code_end:")
    g('.section .rodata,"a"')
    g(".p2align 6")
    g(f".amdhsa_kernel {KNAME}")
    g("  .amdhsa_next_free_vgpr 512")
    g("  .amdhsa_next_free_sgpr 102")
    g("  .amdhsa_accum_offset 256")
    g("  .amdhsa_group_segment_fixed_size 0")
    g("  .amdhsa_kernarg_size 112")
    g("  .amdhsa_user_sgpr_count 2")
    g("  .amdhsa_user_sgpr_kernarg_segment_ptr 1")
    g("  .amdhsa_system_sgpr_workgroup_id_x 1")
    g("  .amdhsa_float_denorm_mode_32 3")
    g(".end_amdhsa_kernel")
    return g


def set_opts(argv):
    global KA, RA_W
    for a in argv:
        if a.startswith("--opt="):
            for kv in a[6:].split(","):
                k, v = kv.split("=")
                OPT[k] = int(v)
    KA = OPT.get("ka", KA)
    RA_W = KA * 2048

if __name__ == "__main__":
    set_opts(sys.argv)
    g = build(profile="dbg" if "--dbg" in sys.argv else ("--prof" in sys.argv))
    out = [a for a in sys.argv[1:] if not a.startswith("--")]
    txt = g.text()
    if out:
        open(out[0], "w").write(txt)
    else:
        sys.stdout.write(txt)
```

```python
import sys
from asmlib import A, KNAME

S, D, F = 2048, 448, 1792
NWG = 256
BIG = 0x80000000

EPOCH = 0
FLAG0, FLAG1, FLAG2, FLAG3 = 0x10000, 0x20000, 0x30000, 0x40000
FSTR = 64
KVT, YT, HNT, HH, UT = 0x100000, 0x400000, 0x700000, 0x900000, 0xB00000
PROF = 0xD00000
KSLAB = 3 * 3584
YSLAB = 3 * 4096
WS_BYTES = 0x1000000
OCT = D * 16
PLANE = OCT // 2

sQ, sK, sV, sSK, sSS, sDD, sW1, sB1, sW2, sB2, sOUT, sWS = 4, 8, 12, 16, 20, 24, 28, 32, 36, 40, 44, 48
sWV, sNONCE, sBUD, sX, sY, sCT, sDT, sFT = 52, 53, 54, 55, 56, 57, 58, 59
sT0, sT1, sT2, sT3, sT4, sT5 = 60, 61, 62, 63, 64, 65
sMASK = 66
sJ = 67
sST = 68
sEX = 84
sP0, sP1 = 86, 88
sC1, sC2 = 90, 91
sOFF = 92
sSTL = 93
sR1 = 94
sM0 = 95
sWB = 96
sRA = 97

L_TOEP = 0
TOEP_P = 4416
TOEP_CH = 4 * TOEP_P
L_U = 2 * TOEP_CH
U_CH = 7680
L_STATS = 163328
L_RED = 131072
L_CX = 118784
L_RA = 51200
KA = 8
RA_W = KA * 2048
LDS_BYTES = 163840

OPT = dict(pf1=2, pf2=1, dma_step=2, drain_dma=4, mall1=0, mall2=0, ka=8, pf_at=0, drain_dma3=0, gap=3, dma_lead=0, dma_from=0, nslot=11, xpos=1, qpos=2, early=2, nt0=3, cpf=1, dbgwg=37, pf1a=0, pf1rows=384, pf1c=0, nb1=14, k1=10, k2=14, k3=22, dma_to=24, gappk=0, gapfrom=2, mask_retry=1, nb2=8, nbs=0, nb3=10, c_late=0, winF=0, winF2=1)


DBG_STAMPS = ["start", "p0 k,v landed", "p0 stores issued", "slot A done", "p1 kv landed", "p1 start mfma", "p1 mfma done",
              "p1 W staged", "p2 y landed", "p2 stores issued", "g1 flags seen", "g1 pass 1 mfma done", "g1 flag out",
              "g2 flags seen", "g2 pass 1 mfma done", "end"]


class G(A):
    def __init__(self, profile=False):
        super().__init__()
        self.vm = 0
        self.lg = 0
        self.profile = profile
        self.nstamp = 0
        self.sreg = (152, 154)
        self.pending = []
    def slot(self, n=1):
        for _ in range(n):
            if self.pending:
                self.pending.pop(0)()
    def flush(self):
        self.slot(len(self.pending))
    def record(self, fns, ids=None):
        keep, vm, lg = self.lines, self.vm, self.lg
        self.lines = []
        for f in fns: f()
        lines, self.lines, self.vm, self.lg = self.lines, keep, vm, lg
        ops = []
        for l in lines:
            if l.startswith("ds_"):
                ops.append((3 if "write_b128" in l else 1, lambda l=l: self.ds(l)))
            elif l.startswith("buffer_"):
                ops.append((2, lambda l=l: (ids.append(self.vmem(l)) if ids is not None else self.vmem(l))))
            elif l.startswith(("v_exp", "v_rcp", "v_rsq")):
                ops.append((2, lambda l=l: self(l)))
            else:
                ops.append((1, lambda l=l: self(l)))
        return ops
    def gap(self, ops, budget):
        while ops and budget > 0:
            c, f = ops[0]
            if c > budget and budget < 3: break
            ops.pop(0); f(); budget -= c
    def vmem(self, s):
        self(s); self.vm += 1
        return self.vm
    def wait_vm(self, opid):
        n = self.vm - opid
        assert 0 <= n
        self(f"s_waitcnt vmcnt({min(n, 63)})")
    def wait_vm_all(self):
        self("s_waitcnt vmcnt(0)")
    def ds(self, s):
        self(s); self.lg += 1
        return self.lg
    def wait_lg(self, opid):
        n = self.lg - opid
        assert n >= 0
        self(f"s_waitcnt lgkmcnt({min(n, 15)})")
    def wait_lg_all(self):
        self("s_waitcnt lgkmcnt(0)")
    def nop(self, n):
        while n > 0:
            k = min(n, 16)
            self(f"s_nop {k-1}")
            n -= k
    def stamp(self, name):
        if not self.profile:
            return
        if self.profile == "lite" and name not in ("start", "end"):
            return
        if self.profile == "dbg":
            if name not in DBG_STAMPS: return
            i = DBG_STAMPS.index(name)
            a, b = self.sreg
            L = self.uid("L_nodbg")
            self(f"s_cmp_eq_u32 s2, {OPT['dbgwg']}")
            self(f"s_cbranch_scc0 {L}")
            self(f"s_cmp_eq_u32 s{sWV}, 0")
            self(f"s_cbranch_scc0 {L}")
            self(f"s_memrealtime s[{sP0}:{sP0+1}]")
            self("s_waitcnt lgkmcnt(0)")
            self(f"v_mov_b32 v{a}, s{sP0}")
            self(f"v_mov_b32 v{b}, {4*i}")
            self(f"s_mov_b64 s[{sP0}:{sP0+1}], exec")
            self("s_mov_b64 exec, 1")
            self(f"global_store_dword v{b}, v{a}, s[98:99]")
            self(f"s_mov_b64 exec, s[{sP0}:{sP0+1}]")
            self.label(L)
            self.vm += 0
            return
        i = self.nstamp; self.nstamp += 1
        a, b = self.sreg
        self(f"s_memrealtime s[{sP0}:{sP0+1}]")
        self(f"s_memtime s[{sP1}:{sP1+1}]")
        self("s_waitcnt lgkmcnt(0)")
        self(f"v_mov_b32 v{a}, s{sP0}")
        self(f"v_mov_b32 v{a+1}, s{sP1}")
        self(f"s_lshl_b32 s{sP1}, s2, 2")
        self(f"s_add_u32 s{sP1}, s{sP1}, s{sWV}")
        self(f"s_lshl_b32 s{sP1}, s{sP1}, 8")
        self(f"s_add_u32 s{sP1}, s{sP1}, {PROF + 8*i}")
        self(f"v_mov_b32 v{b}, s{sP1}")
        self(f"s_mov_b64 s[{sP0}:{sP0+1}], exec")
        self("s_mov_b64 exec, 1")
        self.vmem(f"buffer_store_dwordx2 v[{a}:{a+1}], v{b}, s[{sWS}:{sWS+3}], 0 offen")
        self(f"s_mov_b64 exec, s[{sP0}:{sP0+1}]")


def r(base, n):
    return f"v[{base}:{base+n-1}]"
def ar(base, n):
    return f"a[{base}:{base+n-1}]"
def sr(base, n=4):
    return f"s[{base}:{base+n-1}]"


def set_srd(g, pairs):
    for sreg, nb in pairs:
        g(f"s_mov_b32 s{sreg+2}, {nb:#x}")
        g(f"s_mov_b32 s{sreg+3}, 0x20000")


def prologue(g):
    g(f"s_cmp_ge_u32 s2, {NWG}")
    g("s_cbranch_scc1 L_exit")
    for sreg, off in ((sK, 8), (sV, 16), (sSK, 24), (sWS, 104)):
        g(f"s_load_dwordx2 s[{sreg}:{sreg+1}], s[0:1], {off}")
    g(f"s_and_b32 s{sX}, s2, 7")
    g(f"s_lshr_b32 s{sY}, s2, 3")
    g(f"s_lshl_b32 s{sJ}, s{sX}, 5")
    g(f"s_add_u32 s{sJ}, s{sJ}, s{sY}")
    set_srd(g, ((sK, S*D*2), (sV, S*D*2), (sSK, D*8), (sWS, WS_BYTES)))
    if g.profile:
        g("v_lshrrev_b32 v2, 6, v0")
        g("s_nop 0")
        g(f"v_readfirstlane_b32 s{sWV}, v2")
        if g.profile == "dbg":
            g("s_load_dwordx2 s[98:99], s[0:1], 96")
        g("s_waitcnt lgkmcnt(0)")


def prologue2(g):
    for sreg, off in ((sSS, 32), (sQ, 0), (sDD, 40), (sW1, 56), (sB1, 64), (sW2, 72), (sB2, 80), (sOUT, 88)):
        g(f"s_load_dwordx2 s[{sreg}:{sreg+1}], s[0:1], {off}")
    set_srd(g, ((sQ, S*D*2), (sSS, D*S*2), (sDD, D*2), (sW1, S*F*2), (sB1, F*2), (sW2, S*F*2), (sB2, S*2), (sOUT, S*D*2)))
    g("v_lshrrev_b32 v98, 6, v0")
    g("v_and_b32 v1, 63, v0")
    g(f"v_readfirstlane_b32 s{sWV}, v98")
    g(f"s_mov_b32 s{sMASK}, 0xffff0000")
    g(f"s_mov_b32 s{sBUD}, 0x40000")
    g(f"s_mul_i32 s{sCT}, s{sX}, 28")
    g(f"s_add_u32 s{sCT}, s{sCT}, s{sY}")
    g(f"s_mul_i32 s{sT0}, s{sY}, 37")
    g(f"s_lshr_b32 s{sT0}, s{sT0}, 8")
    g(f"s_mul_i32 s{sT1}, s{sT0}, 7")
    g(f"s_sub_u32 s{sDT}, s{sY}, s{sT1}")
    g(f"s_lshl_b32 s{sT1}, s{sX}, 2")
    g(f"s_add_u32 s{sSTL}, s{sT1}, s{sT0}")
    g(f"s_mul_i32 s{sT2}, s{sX}, 3")
    g(f"s_add_u32 s{sT2}, s{sT2}, 4")
    g(f"s_cmp_lt_u32 s{sX}, 4")
    g(f"s_cselect_b32 s{sT1}, s{sT1}, s{sT2}")
    g(f"s_cselect_b32 s{sT3}, 28, 21")
    g(f"s_cselect_b32 s{sT2}, 3, 2")
    g(f"s_min_u32 s{sT2}, s{sT2}, s{sT0}")
    g(f"s_add_u32 s{sFT}, s{sT1}, s{sT2}")
    g(f"s_cmp_lt_u32 s{sY}, s{sT3}")
    g(f"s_cselect_b32 s{sR1}, 1, 0")
    g(f"s_lshl_b32 s{sWB}, s{sWV}, 15")
    g(f"s_mul_i32 s{sRA}, s{sWV}, {RA_W}")
    g(f"s_add_u32 s{sRA}, s{sRA}, {L_RA}")


def code_prefetch(g):
    g(f"s_getpc_b64 s[{sP0}:{sP0+1}]")
    g.label("L_pc_here")
    g(f"s_sub_u32 s{sP0}, s{sP0}, L_pc_here-{KNAME}")
    g(f"s_subb_u32 s{sP0+1}, s{sP0+1}, 0")
    g("v_lshlrev_b32 v250, 7, v0")
    g(f"v_min_u32 v250, L_code_end-{KNAME}-4, v250")
    g.vmem(f"global_load_dword v251, v250, s[{sP0}:{sP0+1}]")
    if OPT["cpf"] >= 2:
        g("v_add_u32 v250, 0x8000, v250") if False else None


def unpack_lo(g, dst, src): g(f"v_lshlrev_b32 v{dst}, 16, v{src}")
def unpack_hi(g, dst, src): g(f"v_and_b32 v{dst}, s{sMASK}, v{src}")


def flag_store(g, flagbase, s_index):
    g(f"s_lshl_b32 s{sT0}, s{s_index}, 2")
    g(f"s_add_u32 s{sT0}, s{sT0}, s{sWV}")
    g(f"s_mul_i32 s{sT0}, s{sT0}, {FSTR}")
    g(f"s_add_u32 s{sT0}, s{sT0}, {flagbase}")
    g(f"v_mov_b32 v2, s{sT0}")
    g(f"v_mov_b32 v3, s{sNONCE}")
    g(f"s_mov_b64 s[{sEX}:{sEX+1}], exec")
    g("s_mov_b64 exec, 1")
    g.vmem(f"buffer_store_dword v3, v2, {sr(sWS)}, 0 offen sc1")
    g(f"s_mov_b64 exec, s[{sEX}:{sEX+1}]")


def poll(g, vaddrs, vtmp):
    assert len(vaddrs) == 1
    L = g.uid("L_poll"); Lok = g.uid("L_pollok")
    g.label(L)
    g(f"buffer_load_dword v{vtmp}, v{vaddrs[0]}, {sr(sWS)}, 0 offen sc1")
    g("s_waitcnt vmcnt(0)")
    g(f"v_cmp_ne_u32 vcc, s{sNONCE}, v{vtmp}")
    g("s_nop 1")
    g(f"s_cbranch_vccz {Lok}")
    if OPT["mask_retry"]:
        g("s_mov_b64 exec, vcc")
    g(f"s_sub_u32 s{sBUD}, s{sBUD}, 1")
    g(f"s_cmp_gt_i32 s{sBUD}, 0")
    g(f"s_cbranch_scc1 {L}")
    g.label(Lok)
    g("s_mov_b64 exec, -1")


def gather_tagged(g, vaddr, soffs, imms, dst):
    L = g.uid("L_gath"); Lok = g.uid("L_gathok")
    g.label(L)
    for q in range(3):
        g(f"buffer_load_dwordx4 {r(dst + 4*q, 4)}, v{vaddr}, {sr(sWS)}, {soffs[q]} offen offset:{imms[q]} sc1")
    g("s_waitcnt vmcnt(0)")
    g(f"v_xor_b32 v{dst+3}, s{sNONCE}, v{dst+3}")
    g(f"v_xor_b32 v{dst+7}, s{sNONCE}, v{dst+7}")
    g(f"v_xor_b32 v{dst+11}, s{sNONCE}, v{dst+11}")
    g(f"v_or3_b32 v{dst+3}, v{dst+3}, v{dst+7}, v{dst+11}")
    g(f"v_cmp_ne_u32 vcc, 0, v{dst+3}")
    g("s_nop 1")
    g(f"s_cbranch_vccz {Lok}")
    if OPT["mask_retry"]:
        g("s_mov_b64 exec, vcc")
    g(f"s_sub_u32 s{sBUD}, s{sBUD}, 1")
    g(f"s_cmp_gt_i32 s{sBUD}, 0")
    g(f"s_cbranch_scc1 {L}")
    g.label(Lok)
    g("s_mov_b64 exec, -1")


vTR0, vTR1, vWS = 24, 25, 26

def w_params(which):
    return (sW1, F*2, 32, sFT) if which == 1 else (sW2, S*2, 28, sSTL)

def w_src(g, which):
    srd, pitch, nk, stile = w_params(which)
    g(f"v_lshrrev_b32 v{vWS}, 3, v1")
    g("v_and_b32 v30, 7, v1")
    g("v_lshrrev_b32 v31, 2, v1")
    g("v_and_b32 v31, 4, v31")
    g("v_xor_b32 v30, v30, v31")
    g(f"v_mul_u32_u24 v{vWS}, {pitch}, v{vWS}")
    g(f"v_lshl_add_u32 v{vWS}, v30, 4, v{vWS}")
    g(f"s_mul_i32 s{sT0}, s{sWV}, {16*nk*pitch}")
    g(f"s_lshl_b32 s{sT1}, s{stile}, 7")
    g(f"s_add_u32 s{sT0}, s{sT0}, s{sT1}")
    g(f"v_add_u32 v{vWS}, s{sT0}, v{vWS}")

def w_dma_block(g, which, kstep, half, slot, sbase=None, first=False):
    srd, pitch, nk, stile = w_params(which)
    sbase = sWB if sbase is None else sbase
    lds = slot*2048 + half*1024
    goff = (2*kstep + half)*8*pitch
    base = (lds // 4096) * 4096
    if goff < lds - base:
        base = lds
    key = (sbase, base)
    if first or getattr(g, "m0key", None) != key:
        g(f"s_add_u32 s{sM0}, s{sbase}, {base}")
        g(f"s_mov_b32 m0, s{sM0}")
        g.m0key = key
    imm = lds - base
    g(f"s_mov_b32 s{sOFF}, {goff - imm}")
    ntw = " nt" if OPT["nt0"] & 4 else ""
    return g.vmem(f"buffer_load_dwordx4 v{vWS}, {sr(srd)}, s{sOFF} offen offset:{imm}{ntw} lds")

def w_dma(g, which, k0, kn, slot0, sbase=None):
    last = None
    g.m0key = None
    for kk in range(kn):
        for half in range(2):
            last = w_dma_block(g, which, k0 + kk, half, slot0 + kk, sbase)
    return last

def tr_addr(g):
    g("v_lshrrev_b32 v3, 4, v1")
    g("v_bfe_u32 v4, v1, 2, 2")
    g("v_and_b32 v5, 3, v1")
    g("v_lshrrev_b32 v6, 1, v3")
    g("v_lshlrev_b32 v6, 10, v6")
    g("v_lshl_add_u32 v6, v4, 7, v6")
    g("v_and_b32 v3, 1, v3")
    g("v_lshl_add_u32 v6, v3, 5, v6")
    g("v_lshrrev_b32 v7, 1, v5")
    g("v_lshl_add_u32 v6, v7, 4, v6")
    g("v_and_b32 v7, 1, v5")
    g("v_lshl_add_u32 v6, v7, 3, v6")
    g("v_lshrrev_b32 v7, 1, v4")
    g(f"v_add_u32 v6, s{sWB}, v6")
    g(f"v_lshl_add_u32 v{vTR0}, v7, 6, v6")
    g("v_xor_b32 v7, 1, v7")
    g(f"v_lshl_add_u32 v{vTR1}, v7, 6, v6")

def w_tr(g, k0, kn, slot0=0, va=None):
    va = vTR0 if va is None else va
    for kk in range(kn):
        for nt in range(2):
            for jj in range(2):
                ab = 8*(k0 + kk) + 4*nt + 2*jj
                g.ds(f"ds_read_b64_tr_b16 {ar(ab,2)}, v{va+nt} offset:{(slot0 + kk)*2048 + jj*512}")


def l2_prefetch(g, which, r0=0, r1=None):
    srd, pitch = (sW1, F*2) if which == 1 else (sW2, S*2)
    qrows = (S if which == 1 else F) // 4
    r1 = qrows if r1 is None else r1
    rows = (r1 - r0) // 4
    assert rows % 2 == 0
    L = g.uid("L_nopf")
    g(f"s_cmp_lt_u32 s{sY}, 28")
    g(f"s_cbranch_scc1 {L}")
    if which == 1:
        g(f"s_lshl_b32 s{sT1}, s{sX}, 2")
        g(f"s_mul_i32 s{sT2}, s{sX}, 3")
        g(f"s_add_u32 s{sT2}, s{sT2}, 4")
        g(f"s_cmp_lt_u32 s{sX}, 4")
        g(f"s_cselect_b32 s{sT1}, s{sT1}, s{sT2}")
        g(f"s_lshl_b32 s{sT1}, s{sT1}, 7")
    else:
        g(f"s_lshl_b32 s{sT1}, s{sX}, 9")
    g(f"s_sub_u32 s{sT0}, s{sY}, 28")
    g(f"s_mul_i32 s{sT0}, s{sT0}, {qrows}")
    g(f"s_mul_i32 s{sT2}, s{sWV}, {rows}")
    g(f"s_add_u32 s{sT0}, s{sT0}, s{sT2}")
    g(f"s_add_u32 s{sT0}, s{sT0}, {r0}")
    g(f"s_mul_i32 s{sT0}, s{sT0}, {pitch}")
    g(f"s_add_u32 s{sT0}, s{sT0}, s{sT1}")
    g("v_lshrrev_b32 v2, 5, v1")
    g(f"v_mul_u32_u24 v2, {pitch}, v2")
    g("v_and_b32 v3, 31, v1")
    g("v_lshl_add_u32 v2, v3, 4, v2")
    g(f"v_add_u32 v2, s{sT0}, v2")
    for i in range(rows // 2):
        g(f"s_mov_b32 s{sOFF}, {2*i*pitch}")
        g(f"buffer_load_dwordx4 {ar(4*(i % 16), 4)}, v2, {sr(srd)}, s{sOFF} offen" + (" nt" if OPT["nt0"] & 8 else ""))
    g.label(L)
    return rows // 2


def mall_head(g):
    nrow = 16 * KA
    per_q = nrow * F * 2
    n = -(-per_q * 4 // (1024 * 1024))
    share = n * 1024
    wpq = -(-per_q // share)
    g(f"s_lshl_b32 s{sT0}, s2, 2")
    g(f"s_add_u32 s{sT0}, s{sT0}, s{sWV}")
    g(f"s_lshr_b32 s{sT1}, s{sT0}, 8")
    g(f"s_and_b32 s{sT0}, s{sT0}, 255")
    g(f"s_mul_i32 s{sT0}, s{sT0}, {share}")
    g(f"s_mul_i32 s{sT1}, s{sT1}, {512*F*2}")
    g(f"s_add_u32 s{sT0}, s{sT0}, s{sT1}")
    g(f"v_lshlrev_b32 v43, 4, v1")
    g(f"v_add_u32 v43, s{sT0}, v43")
    for i in range(n):
        g.vmem(f"buffer_load_dwordx4 {ar(224 + 4*i, 4)}, v43, {sr(sW1)}, 0 offen offset:{1024*i}")


def mall_prefetch(g, which, pieces=False, conv=False):
    va = 43 if which == 2 else 19
    srd = sW1 if which == 1 else sW2
    if which == 1 and not conv:
        n = 7
        g(f"s_lshl_b32 s{sT0}, s2, 2")
    else:
        n = 8
        g(f"s_lshl_b32 s{sT0}, s{sCT}, 2")
    g(f"s_add_u32 s{sT0}, s{sT0}, s{sWV}")
    g(f"s_mul_i32 s{sT0}, s{sT0}, {n*1024}")
    g(f"v_lshlrev_b32 v{va}, 4, v1")
    g(f"v_add_u32 v{va}, s{sT0}, v{va}")
    def one(i):
        def f():
            if i < 4:
                g.vmem(f"buffer_load_dwordx4 {ar(224 + 4*i, 4)}, v{va}, {sr(srd)}, 0 offen offset:{1024*i}")
            else:
                g(f"s_mov_b32 s{sOFF}, 4096")
                g.vmem(f"buffer_load_dwordx4 {ar(224 + 4*i, 4)}, v{va}, {sr(srd)}, s{sOFF} offen offset:{1024*(i-4)}")
        return f
    P = [one(i) for i in range(n)]
    if pieces:
        return P
    for f in P: f()


vKR, vVR, vQR, vSKR, vDR, vEP = 8, 20, 28, 36, 40, 41
vSW0, vSW1, vSWX = 44, 52, 60
vKF, vSKP = 68, 90
vKVF = 98
vKVP = 160
vQK = 232
vDK = 42
vTMP = 124
vSA = 156
vQF, vQN, vKVD = 176, 192, 208


def kvreg(c, i):
    return vKVP + 4*c + i if i < 3 else vKVP + 8 + c


def p0(g):
    g(f"s_mul_i32 s{sT0}, s{sJ}, {OCT}")
    g("v_lshlrev_b32 v2, 2, v0")
    g(f"v_add_u32 v3, s{sT0}, v2")
    g(f"v_mov_b32 v4, {BIG:#x}")
    g(f"v_cmp_gt_u32 vcc, 224, v0")
    g("v_lshlrev_b32 v7, 4, v0")
    g("s_nop 0")
    g("v_cndmask_b32 v3, v4, v3, vcc")
    g(f"v_add_u32 v5, {5*896}, v3")
    g(f"v_subrev_u32 v6, {3*896}, v3")
    g(f"s_cmp_eq_u32 s{sJ}, 0")
    g(f"s_cselect_b32 s{sT1}, 1, 0")
    g(f"v_mov_b32 v19, s{sT1}")
    g("v_cmp_eq_u32 vcc, 1, v19")
    g("v_mov_b32 v19, 0")
    g("s_nop 0")
    g("v_cndmask_b32 v6, v6, v4, vcc")
    g("s_waitcnt lgkmcnt(0)")
    nt = " nt" if OPT["nt0"] & 1 else ""
    nts = " nt" if OPT["nt0"] & 2 else ""
    if OPT["cpf"] == 2:
        code_prefetch(g)
    def rowload(dst, srd, rr):
        if rr < 0:
            return g.vmem(f"buffer_load_dword v{dst}, v6, {sr(srd)}, 0 offen offset:{(rr+3)*896}{nt}")
        if rr < 5:
            return g.vmem(f"buffer_load_dword v{dst}, v3, {sr(srd)}, 0 offen offset:{rr*896}{nt}")
        return g.vmem(f"buffer_load_dword v{dst}, v5, {sr(srd)}, 0 offen offset:{(rr-5)*896}{nt}")
    for rr in range(-3, 8):
        rowload(vKR + rr + 3, sK, rr)
    for rr in range(8):
        rowload(vVR + rr, sV, rr)
    g.vmem(f"buffer_load_dwordx4 {r(vSKR,4)}, v7, {sr(sSK)}, 0 offen")
    iv = g.vmem(f"buffer_load_dword v{vEP}, v19, {sr(sWS)}, 0 offen sc1")
    prologue2(g)
    if OPT["cpf"] == 1:
        code_prefetch(g)
    if OPT["mall1"] == 1:
        mall_prefetch(g, 1)
    if OPT["mall1"] == 3:
        mall_head(g)
    g(f"s_lshl_b32 s{sT0}, s{sCT}, 13")
    g(f"v_add_u32 v{vSA}, s{sT0}, v7")
    g(f"v_subrev_u32 v{vSA+1}, 64, v{vSA}")
    g(f"v_subrev_u32 v{vSA+2}, 48, v{vSA}")
    g("v_cmp_le_u32 vcc, 4, v0")
    g(f"s_mov_b32 s{sC1}, 4096")
    g("s_nop 0")
    g(f"v_cndmask_b32 v{vSA+1}, v4, v{vSA+1}, vcc")
    g("v_cmp_le_u32 vcc, 3, v0")
    g("s_nop 1")
    g(f"v_cndmask_b32 v{vSA+2}, v4, v{vSA+2}, vcc")
    g("v_cmp_le_u32 vcc, 4, v1")
    g("v_mov_b32 v7, 0")
    g(f"v_mov_b32 v{vSA+3}, {4096 - 64}")
    g(f"v_cndmask_b32 v7, v7, v{vSA+3}, vcc")
    g(f"v_lshlrev_b32 v{vSA+3}, 4, v1")
    g(f"v_add3_u32 v7, v7, v{vSA+3}, s{sT0}")
    g(f"v_add_u32 v7, {16*256 - 64}, v7")
    g("v_cmp_gt_u32 vcc, 8, v1")
    g("s_nop 1")
    g(f"v_cndmask_b32 v{vSA+3}, v4, v7, vcc")
    def late_loads():
        g.vmem(f"buffer_load_dwordx4 {r(vSW0,4)}, v{vSA+1}, {sr(sSS)}, 0 offen{nts}")
        g.vmem(f"buffer_load_dwordx4 {r(vSW0+4,4)}, v{vSA+2}, {sr(sSS)}, 0 offen{nts}")
        g.vmem(f"buffer_load_dwordx4 {r(vSW1,4)}, v{vSA+1}, {sr(sSS)}, s{sC1} offen{nts}")
        g.vmem(f"buffer_load_dwordx4 {r(vSW1+4,4)}, v{vSA+2}, {sr(sSS)}, s{sC1} offen{nts}")
        g.vmem(f"buffer_load_dwordx4 {r(vSWX,4)}, v{vSA+3}, {sr(sSS)}, 0 offen{nts}")
        g.ssm_id = g.vmem(f"buffer_load_dwordx4 {r(vSWX+4,4)}, v{vSA+3}, {sr(sSS)}, 0 offen offset:16{nts}")
        for rr in range(8):
            rowload(vQK + rr, sQ, rr)
        g.q_id = g.vmem(f"buffer_load_dword v{vDK}, v2, {sr(sDD)}, 0 offen")

    g("s_waitcnt lgkmcnt(0)")
    if OPT["early"] == 1:
        late_loads()
    g.stamp("p0 loads issued")
    g.wait_vm(iv)
    g.stamp("p0 k,v landed")
    g(f"v_readfirstlane_b32 s{sNONCE}, v{vEP}")
    late_ops = []
    if OPT["early"] == 2:
        ids_ = []
        late_ops = g.record([late_loads], ids_)
        n_ssm = 6
        def fix_ids():
            g.ssm_id = ids_[5]; g.q_id = ids_[-1]
    for j in range(4):
        src0 = vSKR + (j >> 1); src1 = vSKR + 2 + (j >> 1)
        (unpack_hi if j & 1 else unpack_lo)(g, vSKP + 2*j, src0)
        (unpack_hi if j & 1 else unpack_lo)(g, vSKP + 2*j + 1, src1)
    g(f"s_add_u32 s{sNONCE}, s{sNONCE}, 0x9e3779b9")
    for i in range(11):
        unpack_lo(g, vKF + 2*i, vKR + i)
        unpack_hi(g, vKF + 2*i + 1, vKR + i)
        if i % 2 == 1: g.gap(late_ops, 2)
    for rr in range(8):
        g.gap(late_ops, 2)
        d = vKVF + 2*rr
        kf = lambda q: vKF + 2*(q + 3)
        g(f"v_pk_mul_f32 {r(d,2)}, {r(kf(rr),2)}, {r(vSKP,2)}")
        for j in (1, 2, 3):
            g(f"v_pk_fma_f32 {r(d,2)}, {r(kf(rr-j),2)}, {r(vSKP+2*j,2)}, {r(d,2)}")
        unpack_lo(g, vTMP, vVR + rr)
        unpack_hi(g, vTMP + 1, vVR + rr)
        g(f"v_pk_mul_f32 {r(d,2)}, {r(d,2)}, {r(vTMP,2)}")
    for c in range(2):
        for i in range(4):
            g(f"v_cvt_pk_bf16_f32 v{kvreg(c, i)}, v{vKVF + 2*(7-2*i) + c}, v{vKVF + 2*(6-2*i) + c}")
    for gq in range(3):
        g(f"v_mov_b32 v{vKVP + 4*gq + 3}, s{sNONCE}")
    g(f"v_mov_b32 v{vKVP + 10}, 0")
    g(f"s_mul_i32 s{sT0}, s{sJ}, {KSLAB}")
    g(f"s_add_u32 s{sT0}, s{sT0}, {KVT}")
    g("v_lshlrev_b32 v7, 4, v0")
    g(f"v_add_u32 v7, s{sT0}, v7")
    g("v_cmp_gt_u32 vcc, 224, v0")
    g(f"s_mov_b32 s{sT0}, {2*PLANE}")
    g("s_nop 0")
    g("v_cndmask_b32 v7, v4, v7, vcc")
    g.vmem(f"buffer_store_dwordx4 {r(vKVP,4)}, v7, {sr(sWS)}, 0 offen sc1")
    g.vmem(f"buffer_store_dwordx4 {r(vKVP+4,4)}, v7, {sr(sWS)}, 0 offen offset:{PLANE} sc1")
    ist = g.vmem(f"buffer_store_dwordx4 {r(vKVP+8,4)}, v7, {sr(sWS)}, s{sT0} offen sc1")
    g.stamp("p0 stores issued")
    if g.profile is True: ist = g.vm
    if OPT["early"] == 0:
        late_loads()
    g.gap(late_ops, 1000)
    if OPT["early"] == 2:
        fix_ids()
    if OPT["mall1"] == 2:
        mall_prefetch(g, 1)
    g.stamp("p0 published")


def toeplitz_pass(g, w, vaddr, ch_off):
    XE, XO, WO = 128, 132, 136
    for i in range(4):
        g(f"v_alignbit_b32 v{XE+i}, v{w+i+1}, v{w+i}, 16")
    for i in range(4):
        g(f"v_alignbit_b32 v{XO+i}, v{w+i+2}, v{w+i+1}, 16")
    for i in range(4):
        g(f"v_mov_b32 v{WO+i}, v{w+i+1}")
    src = {0: XE, 2: XO, 3: w+2, 1: WO}
    for p in (3, 0, 2, 1):
        g.ds(f"ds_write_b128 v{vaddr}, {r(src[p],4)} offset:{ch_off + p*TOEP_P}")


def rowstats(g, va, vb, mode):
    LS = L_STATS + (256 if mode == "ln2" else 0)
    for i in range(8):
        g(f"v_permlane32_swap_b32 v{va+i}, v{vb+i}")
    g.slot()
    for i in range(8):
        g(f"v_add_f32 v{va+i}, v{va+i}, v{vb+i}")
    g.slot()
    g("s_nop 0")
    for i in range(4):
        g(f"v_permlane16_swap_b32 v{va+i}, v{va+4+i}")
    for i in range(4):
        g(f"v_add_f32 v{va+i}, v{va+i}, v{va+4+i}")
    g.slot()
    for rot in (8, 4, 2, 1):
        for i in range(4):
            g(f"v_add_f32_dpp v{va+i}, v{va+i}, v{va+i} row_ror:{rot} row_mask:0xf bank_mask:0xf")
        if rot in (4, 1): g.slot()
    g("v_lshrrev_b32 v2, 4, v1")
    g("v_lshrrev_b32 v3, 1, v2")
    g("v_and_b32 v2, 1, v2")
    g("v_lshlrev_b32 v3, 7, v3")
    g("v_lshl_add_u32 v2, v2, 6, v3")
    g(f"s_lshl_b32 s{sT0}, s{sWV}, 2")
    g(f"s_add_u32 s{sT0}, s{sT0}, {LS}")
    g(f"v_add_u32 v2, s{sT0}, v2")
    g(f"s_mov_b64 s[{sEX}:{sEX+1}], exec")
    g(f"s_mov_b32 exec_lo, 0x00010001")
    g(f"s_mov_b32 exec_hi, 0x00010001")
    for i in range(4):
        g.ds(f"ds_write_b32 v2, v{va+i} offset:{16*i}")
    g(f"s_mov_b64 exec, s[{sEX}:{sEX+1}]")
    g("v_and_b32 v2, 7, v1")
    g("v_lshlrev_b32 v2, 4, v2")
    g(f"v_add_u32 v2, {LS}, v2")
    g(f"s_mov_b32 s{sT0}, 0x3b124925")
    g(f"s_mov_b32 s{sT1}, 0x3727c5ac")
    g.slot()
    g.wait_lg_all()
    g("s_barrier")
    g.ds(f"ds_read_b128 {r(va,4)}, v2")
    g.ds(f"ds_read_b128 {r(va+4,4)}, v2 offset:128")
    g.slot()
    g.wait_lg_all()
    g(f"v_add_f32 v{va}, v{va}, v{va+1}")
    g(f"v_add_f32 v{va+4}, v{va+4}, v{va+5}")
    g(f"v_add_f32 v{va+2}, v{va+2}, v{va+3}")
    g(f"v_add_f32 v{va+6}, v{va+6}, v{va+7}")
    g(f"v_add_f32 v{va}, v{va}, v{va+2}")
    g(f"v_add_f32 v{va+4}, v{va+4}, v{va+6}")
    g(f"v_mul_f32 v{va}, s{sT0}, v{va}")
    g(f"v_mul_f32 v{va+4}, s{sT0}, v{va+4}")
    g(f"v_fma_f32 v{va+4}, -v{va}, v{va}, v{va+4}")
    g(f"v_max_f32 v{va+4}, 0, v{va+4}")
    g(f"v_add_f32 v{va+5}, s{sT1}, v{va+4}")
    g(f"v_rsq_f32 v{va+5}, v{va+5}")
    if mode == "ln2":
        g("s_nop 0")
        g(f"v_mul_f32 v{va+6}, v{va+5}, v{va+5}")
        g(f"v_mul_f32 v{va+6}, v{va+6}, v{va+4}")
        g(f"v_add_f32 v{va+6}, s{sT1}, v{va+6}")
        g(f"v_rsq_f32 v{va+6}, v{va+6}")
        g("s_nop 0")
        g(f"v_mul_f32 v{va+5}, v{va+5}, v{va+6}")
    g("s_nop 1")
    for i in range(8):
        g(f"v_readlane_b32 s{sST+2*i}, v{va}, {i}")
        g(f"v_readlane_b32 s{sST+2*i+1}, v{va+5}, {i}")
        if i % 4 == 3: g.slot()
    g("s_nop 1")


def slot_a(g):
    Lskip = g.uid("L_noconv")
    g(f"s_cmp_ge_u32 s{sY}, 28")
    g(f"s_cbranch_scc1 {Lskip}")
    g.wait_vm(g.ssm_id)
    g("v_lshlrev_b32 v2, 4, v0")
    toeplitz_pass(g, vSW0, 2, L_TOEP)
    toeplitz_pass(g, vSW1, 2, L_TOEP + TOEP_CH)
    Lx = g.uid("L_noextra")
    g(f"s_cmp_eq_u32 s{sWV}, 0")
    g(f"s_cbranch_scc0 {Lx}")
    g("v_cmp_le_u32 vcc, 4, v1")
    g("v_mov_b32 v2, 0")
    g(f"v_mov_b32 v3, {TOEP_CH - 64}")
    g("v_cndmask_b32 v2, v2, v3, vcc")
    g("v_lshlrev_b32 v3, 4, v1")
    g("v_add_u32 v2, v2, v3")
    g(f"v_add_u32 v2, {16*256}, v2")
    g(f"s_mov_b64 s[{sEX}:{sEX+1}], exec")
    g("s_mov_b64 exec, 0xff")
    toeplitz_pass(g, vSWX, 2, L_TOEP)
    g(f"s_mov_b64 exec, s[{sEX}:{sEX+1}]")
    g.label(Lx)
    g("v_mov_b32 v128, 0\nv_mov_b32 v129, 0\nv_mov_b32 v130, 0\nv_mov_b32 v131, 0")
    g("v_lshlrev_b32 v2, 4, v0")
    g(f"v_add_u32 v2, {L_U}, v2")
    g("v_cmp_gt_u32 vcc, 160, v0")
    g(f"s_and_saveexec_b64 s[{sEX}:{sEX+1}], vcc")
    Lz = g.uid("L_noz")
    g(f"s_cbranch_execz {Lz}")
    g.ds(f"ds_write_b128 v2, v[128:131]")
    g.ds(f"ds_write_b128 v2, v[128:131] offset:{U_CH}")
    g.label(Lz)
    g(f"s_mov_b64 exec, s[{sEX}:{sEX+1}]")
    g.label(Lskip)
    g.stamp("slot A done")


def q_stats(g):
    for rr in range(8):
        unpack_lo(g, vQF + 2*rr, vQK + rr)
        unpack_hi(g, vQF + 2*rr + 1, vQK + rr)
        if rr % 4 == 3: g.slot()
    va, vb = 128, 136
    for rr in range(8):
        g(f"v_add_f32 v{va+rr}, v{vQF+2*rr}, v{vQF+2*rr+1}")
        g(f"v_mul_f32 v{vb+rr}, v{vQF+2*rr}, v{vQF+2*rr}")
        g(f"v_fmac_f32 v{vb+rr}, v{vQF+2*rr+1}, v{vQF+2*rr+1}")
        if rr % 3 == 2: g.slot()
    g("s_nop 1")
    rowstats(g, va, vb, "ln1")
    for rr in range(8):
        g(f"v_pk_add_f32 {r(vQN+2*rr,2)}, {r(vQF+2*rr,2)}, s[{sST+2*rr}:{sST+2*rr+1}] op_sel:[0,0] op_sel_hi:[1,0] neg_lo:[0,1] neg_hi:[0,1]")
        g(f"v_pk_mul_f32 {r(vQN+2*rr,2)}, {r(vQN+2*rr,2)}, s[{sST+2*rr}:{sST+2*rr+1}] op_sel:[0,1] op_sel_hi:[1,1]")
        if rr % 4 == 3: g.slot()
    unpack_lo(g, 128, vDK)
    unpack_hi(g, 129, vDK)
    for rr in range(8):
        i = (7 - rr) >> 1
        for c in range(2):
            (unpack_lo if rr & 1 else unpack_hi)(g, vKVD + 2*rr + c, kvreg(c, i))
        g(f"v_pk_mul_f32 {r(vKVD+2*rr,2)}, {r(vKVD+2*rr,2)}, v[128:129]")
        if rr % 3 == 2: g.slot()
    g.flush()


vACC0, vACC1, vFR = 64, 80, 96


def p1(g):
    assert L_RA + 4 * RA_W <= L_CX and L_CX + 32768 <= L_STATS
    Lskip = g.uid("L_noconv"); Lend = g.uid("L_convend")
    g(f"s_cmp_ge_u32 s{sY}, 28")
    g(f"s_cbranch_scc1 {Lskip}")
    if OPT["qpos"] == 2:
        g.wait_vm(g.q_id)
        q_stats(g)
    tr_addr(g)
    g(f"s_sub_u32 s{sT0}, s{sRA}, s{sWB}")
    g(f"v_add_u32 v28, s{sT0}, v{vTR0}")
    g(f"v_add_u32 v29, s{sT0}, v{vTR1}")
    g(f"s_lshl_b32 s{sT1}, s{sCT}, 4")
    g(f"s_add_u32 s{sT1}, s{sT1}, {KVT}")
    g(f"v_mul_u32_u24 v3, {KSLAB}, v0")
    g(f"v_add_u32 v3, s{sT1}, v3")
    g("v_lshrrev_b32 v4, 2, v0")
    g("v_mul_u32_u24 v4, 80, v4")
    g("v_and_b32 v5, 3, v0")
    g("v_lshl_add_u32 v4, v5, 4, v4")
    g(f"v_add_u32 v4, {L_U + 32*80}, v4")
    g("v_and_b32 v6, 31, v1")
    g("v_lshrrev_b32 v7, 5, v1")
    g(f"s_lshr_b32 s{sT4}, s{sWV}, 1")
    g(f"s_and_b32 s{sT5}, s{sWV}, 1")
    g("v_and_b32 v17, 3, v6")
    g(f"v_mul_u32_u24 v16, {TOEP_P}, v17")
    g("v_lshrrev_b32 v17, 2, v6")
    g("v_lshl_add_u32 v16, v17, 3, v16")
    g("v_lshlrev_b32 v17, 4, v7")
    g("v_sub_u32 v16, v16, v17")
    g(f"s_mul_i32 s{sT2}, s{sT4}, {TOEP_CH}")
    g(f"s_lshl_b32 s{sT3}, s{sT5}, 5")
    g(f"s_sub_u32 s{sT2}, s{sT2}, s{sT3}")
    g(f"s_add_u32 s{sT2}, s{sT2}, {L_TOEP + 48}")
    g(f"v_add_u32 v16, s{sT2}, v16")
    g("v_mul_u32_u24 v18, 80, v6")
    g("v_lshl_add_u32 v18, v7, 4, v18")
    g(f"s_mul_i32 s{sT2}, s{sT4}, {U_CH}")
    g(f"s_add_u32 s{sT2}, s{sT2}, s{sT3}")
    g(f"s_add_u32 s{sT2}, s{sT2}, {L_U + 80}")
    g(f"v_add_u32 v18, s{sT2}, v18")
    w_src(g, 1)
    g(f"s_mov_b32 s{sC1}, {2*PLANE}")
    gather_tagged(g, 3, ["0", "0", f"s{sC1}"], [0, PLANE, 0], 44)
    g.stamp("p1 kv landed")
    g("v_mov_b32 v47, v52")
    g("v_mov_b32 v51, v53")
    g.ds(f"ds_write_b128 v4, v[44:47]")
    g.ds(f"ds_write_b128 v4, v[48:51] offset:{U_CH}")
    if OPT["qpos"] == 1:
        q_stats(g)
    g.wait_lg_all()
    g("s_barrier")
    g("v_lshlrev_b32 v4, 4, v1")
    g(f"v_add_u32 v8, {L_CX}, v4")
    g(f"s_lshl_b32 s{sT2}, s{sWV}, 11")
    g(f"v_add_u32 v5, s{sT2}, v8")
    g(f"s_lshl_b32 s{sT2}, s{sWV}, 13")
    g(f"v_add_u32 v9, s{sT2}, v8")
    g(f"s_mul_i32 s{sT2}, s{sCT}, {YSLAB}")
    g(f"s_lshl_b32 s{sT3}, s{sWV}, 10")
    g(f"s_add_u32 s{sT2}, s{sT2}, s{sT3}")
    g(f"s_add_u32 s{sT2}, s{sT2}, {YT}")
    g(f"v_add_u32 v10, s{sT2}, v4")
    g.stamp("p1 start mfma")
    DEPTH = 2
    def rd(m, which):
        b = vFR + 16 * (m % (DEPTH + 1))
        if which == 0:
            g.ds(f"ds_read_b64 {r(b,2)}, v16 offset:{64*m}")
            return g.ds(f"ds_read_b64 {r(b+2,2)}, v16 offset:{64*m + 8}")
        if which == 1: return g.ds(f"ds_read_b128 {r(b+8,4)}, v18 offset:{(31-m)*80}")
        if which == 2: return g.ds(f"ds_read_b128 {r(b+12,4)}, v18 offset:{(63-m)*80}")
        g.ds(f"ds_read_b64 {r(b+4,2)}, v16 offset:{64*(m+32)}")
        return g.ds(f"ds_read_b64 {r(b+6,2)}, v16 offset:{64*(m+32) + 8}")
    last = {}
    for m in range(DEPTH):
        for w in range(4):
            last[m] = rd(m, w)
    g.m0key = None
    dma_a = None
    nda = 0
    pf1 = mall_prefetch(g, 1, pieces=True, conv=True) if OPT["mall1"] == 5 else []
    pf = mall_prefetch(g, 2, pieces=True) if OPT["mall2"] else []
    d0 = OPT["dma_from"]
    for m in range(32):
        g.wait_lg(last[m])
        b = vFR + 16 * (m % (DEPTH + 1))
        c0 = "0" if m == 0 else r(vACC0, 16)
        c1 = "0" if m == 0 else r(vACC1, 16)
        nx = m + DEPTH
        g(f"v_mfma_f32_32x32x16_bf16 {r(vACC0,16)}, {r(b,4)}, {r(b+8,4)}, {c0}")
        if nx < 32:
            rd(nx, 0); rd(nx, 1)
        g(f"v_mfma_f32_32x32x16_bf16 {r(vACC1,16)}, {r(b,4)}, {r(b+12,4)}, {c1}")
        if nx < 32:
            rd(nx, 2); last[nx] = rd(nx, 3)
        g(f"v_mfma_f32_32x32x16_bf16 {r(vACC1,16)}, {r(b+4,4)}, {r(b+8,4)}, {r(vACC1,16)}")
        if pf1:
            pf1.pop(0)()
        elif pf and m >= OPT["pf_at"]:
            pf.pop(0)()
        while m >= d0 and nda < 2 * KA and nda * (OPT["dma_to"] - d0) <= (m - d0) * 2 * KA:
            dma_a = w_dma_block(g, 1, nda >> 1, nda & 1, nda >> 1, sbase=sRA)
            nda += 1
    assert nda == 2 * KA and not pf1
    assert not pf
    g.stamp("p1 mfma done")
    g(f"s_mov_b32 s{sT2}, 4096")
    g(f"s_mov_b32 s{sT3}, 8192")
    g.nop(10)
    for ow in range(4):
        acc = vACC0 if ow < 2 else vACC1
        for hf in range(2):
            g.ds(f"ds_write_b128 v5, {r(acc + 8*(ow & 1) + 4*hf, 4)} offset:{ow*8192 + hf*1024}")
    g.wait_lg_all()
    g("s_barrier")
    for src in range(4):
        for hf in range(2):
            g.ds(f"ds_read_b128 {r(vFR + 8*src + 4*hf, 4)}, v9 offset:{src*2048 + hf*1024}")
    g.wait_lg_all()
    for i in range(0, 8, 2):
        g(f"v_pk_add_f32 {r(vFR+i,2)}, {r(vFR+i,2)}, {r(vFR+8+i,2)}")
        g(f"v_pk_add_f32 {r(vFR+16+i,2)}, {r(vFR+16+i,2)}, {r(vFR+24+i,2)}")
    Gb = vFR + 32
    for c in range(2):
        for i in range(4):
            g(f"v_cvt_pk_bf16_f32 v{Gb+4*c+i}, v{vFR+16*c+2*i}, v{vFR+16*c+2*i+1}")
    g(f"v_mov_b32 v{Gb+10}, 0")
    g(f"v_mov_b32 v{Gb+11}, s{sNONCE}")
    for c in range(2):
        g(f"v_permlane32_swap_b32 v{Gb+4*c}, v{Gb+4*c+2}")
        g(f"v_permlane32_swap_b32 v{Gb+4*c+1}, v{Gb+4*c+3}")
    g(f"v_mov_b32 v{Gb+8}, v{Gb+3}")
    g(f"v_mov_b32 v{Gb+9}, v{Gb+7}")
    g(f"v_mov_b32 v{Gb+3}, s{sNONCE}")
    g(f"v_mov_b32 v{Gb+7}, s{sNONCE}")
    g.vmem(f"buffer_store_dwordx4 {r(Gb+8,4)}, v10, {sr(sWS)}, s{sT3} offen sc1")
    g.vmem(f"buffer_store_dwordx4 {r(Gb,4)}, v10, {sr(sWS)}, 0 offen sc1")
    ist = g.vmem(f"buffer_store_dwordx4 {r(Gb+4,4)}, v10, {sr(sWS)}, s{sT2} offen sc1")
    g.stamp("p1 stores issued")
    if g.profile is True: ist = g.vm
    g.wait_vm(dma_a)
    w_tr(g, 0, KA, 0, va=28)
    g.wait_lg_all()
    g("s_barrier")
    blocks = [(KA + (i >> 1), i & 1, i >> 1) for i in range(32)]
    g.m0key = None
    nb1 = OPT["nb1"]
    g.b_last = None
    for (k, hf, sl) in blocks[:nb1]:
        g.b_last = w_dma_block(g, 1, k, hf, sl)
    def later(k, hf, sl):
        def f():
            g.b_last = w_dma_block(g, 1, k, hf, sl)
        return f
    g.bq = [later(k, hf, sl) for (k, hf, sl) in blocks[nb1:]]
    g.stamp("p1 W staged")
    p2(g, True)
    g(f"s_branch {Lend}")
    g.label(Lskip)
    if OPT["pf1"] == 2:
        n1 = l2_prefetch(g, 1, 16*KA if OPT["pf1a"] == 0 else 0, min(512, 16*KA + OPT["pf1rows"]))
        g(f"s_waitcnt vmcnt({min(63, n1)})")
    else:
        g.wait_vm_all()
    q_stats(g)
    p2(g, False)
    g.label(Lend)
    g.stamp("p2 published")


def p2(g, conv):
    g(f"s_lshr_b32 s{sT0}, s{sJ}, 7")
    g(f"s_lshl_b32 s{sT0}, s{sT0}, 7")
    g(f"s_and_b32 s{sT1}, s{sJ}, 3")
    g(f"s_lshl_b32 s{sT1}, s{sT1}, 5")
    g(f"s_add_u32 s{sT0}, s{sT0}, s{sT1}")
    g(f"s_bfe_u32 s{sT1}, s{sJ}, {(5 << 16) | 2}")
    g(f"s_add_u32 s{sT0}, s{sT0}, s{sT1}")
    g(f"s_lshl_b32 s{sT0}, s{sT0}, 4")
    g(f"s_add_u32 s{sT4}, s{sT0}, {YT}")
    g(f"s_add_u32 s{sT5}, s{sT4}, 4096")
    g(f"s_add_u32 s{sC2}, s{sT4}, 8192")
    g(f"v_mov_b32 v6, {BIG:#x}")
    g(f"v_mul_u32_u24 v19, {YSLAB}, v0")
    g("v_cmp_gt_u32 vcc, 224, v0")
    g(f"s_mul_i32 s{sT1}, s{sJ}, {OCT}")
    g("v_lshlrev_b32 v5, 4, v0")
    g(f"v_add_u32 v5, s{sT1}, v5")
    g("v_cndmask_b32 v19, v6, v19, vcc")
    g("v_cndmask_b32 v5, v6, v5, vcc")
    g("v_lshlrev_b32 v27, 2, v0")
    g(f"v_add_u32 v27, s{sT1}, v27")
    g("v_cndmask_b32 v27, v6, v27, vcc")
    g(f"v_add_u32 v28, {4*896}, v27")
    g("v_mov_b32 v29, v5")
    tr_addr(g)
    for i in range(12):
        g(f"v_mov_b32 v{44+i}, 0")
    g(f"s_cmp_eq_u32 s{sWV}, 3")
    g(f"s_cselect_b32 s{sT0}, 0, -1")
    g(f"s_mov_b64 s[{sEX+0}:{sEX+1}], exec")
    g(f"s_mov_b32 exec_hi, s{sT0}")
    gather_tagged(g, 19, [f"s{sT4}", f"s{sT5}", f"s{sC2}"], [0, 0, 0], 44)
    g.stamp("p2 y landed")
    if conv:
        for _ in range(min(OPT["nb2"], len(g.bq))):
            g.bq.pop(0)()
        g.b12_last = g.b_last
        g.kb = (32 - len(g.bq)) // 2
        n_spr = min(OPT["nbs"], len(g.bq))
        g.pending += g.bq[:n_spr]; g.bq = g.bq[n_spr:]
    vH = 32
    for rr in range(8):
        for c in range(2):
            i = rr >> 1
            (unpack_hi if rr & 1 else unpack_lo)(g, vH + 2*rr + c, 44 + 4*c + i if i < 3 else 52 + c)
        if rr % 4 == 3: g.slot()
    for rr in range(8):
        g(f"v_pk_add_f32 {r(vH+2*rr,2)}, {r(vH+2*rr,2)}, {r(vKVD+2*rr,2)}")
    g.slot()
    for rr in range(8):
        g(f"v_pk_fma_f32 {r(vH+2*rr,2)}, {r(vQN+2*rr,2)}, {r(vH+2*rr,2)}, {r(vQF+2*rr,2)}")
    g.slot()
    va, vb = 64, 72
    for rr in range(8):
        g(f"v_add_f32 v{va+rr}, v{vH+2*rr}, v{vH+2*rr+1}")
        g(f"v_mul_f32 v{vb+rr}, v{vH+2*rr}, v{vH+2*rr}")
        g(f"v_fmac_f32 v{vb+rr}, v{vH+2*rr+1}, v{vH+2*rr+1}")
        if rr % 3 == 2: g.slot()
    for rr in range(8):
        g(f"v_cvt_pk_bf16_f32 v{16+rr}, v{vH+2*rr}, v{vH+2*rr+1}")
    g.slot()
    rowstats(g, va, vb, "ln2")
    for rr in range(8):
        g(f"v_pk_add_f32 {r(vH+2*rr,2)}, {r(vH+2*rr,2)}, s[{sST+2*rr}:{sST+2*rr+1}] op_sel:[0,0] op_sel_hi:[1,0] neg_lo:[0,1] neg_hi:[0,1]")
        g(f"v_pk_mul_f32 {r(vH+2*rr,2)}, {r(vH+2*rr,2)}, s[{sST+2*rr}:{sST+2*rr+1}] op_sel:[0,1] op_sel_hi:[1,1]")
        if rr % 4 == 3: g.slot()
    g.flush()
    for c in range(2):
        for i in range(4):
            g(f"v_cvt_pk_bf16_f32 v{8+4*c+i}, v{vH+2*(2*i)+c}, v{vH+2*(2*i+1)+c}")
    g(f"s_mov_b32 s{sT2}, {HNT}")
    g.vmem(f"buffer_store_dwordx4 v[8:11], v29, {sr(sWS)}, s{sT2} offen sc1")
    g.vmem(f"buffer_store_dwordx4 v[12:15], v29, {sr(sWS)}, s{sT2} offen offset:{PLANE} sc1")
    g(f"s_mov_b32 s{sT3}, {HH}")
    for rr in range(8):
        if rr < 4:
            ist = g.vmem(f"buffer_store_dword v{16+rr}, v27, {sr(sWS)}, s{sT3} offen offset:{rr*896} sc1")
        else:
            ist = g.vmem(f"buffer_store_dword v{16+rr}, v28, {sr(sWS)}, s{sT3} offen offset:{(rr-4)*896} sc1")
    g.stamp("p2 stores issued")
    if g.profile is True: ist = g.vm
    if conv:
        NC = 32 - KA - 16
        cblocks = [(KA + 16 + (i >> 1), i & 1, i >> 1) for i in range(2*NC)]
        if OPT["winF"]:
            kb = g.kb
            assert len(g.bq) % 2 == 0 and kb == (32 - len(g.bq)) // 2 and kb >= NC
            g.wait_vm(g.b12_last)
            for kk in range(kb):
                w_tr(g, KA + kk, 1, kk)
                if g.bq: g.bq.pop(0)()
            while g.bq: g.bq.pop(0)()
            g.wait_lg_all()
            nd = min(OPT["drain_dma"], len(cblocks))
            for (k, hf, sl) in cblocks[:nd]:
                w_dma_block(g, 1, k, hf, sl)
            g.wait_vm(ist)
            flag_store(g, FLAG2, sJ)
            g.stamp("p2 flag out")
            rest = cblocks[nd:]
            g.b_rest = (KA + kb, 16 - kb, kb)
        elif not g.bq:
            g.wait_vm(g.b_last)
            w_tr(g, KA, 16, 0)
            g.wait_lg_all()
            nd = min(OPT["drain_dma"], len(cblocks))
            g.m0key = None
            for (k, hf, sl) in cblocks[:nd]:
                w_dma_block(g, 1, k, hf, sl)
            g.wait_vm(ist)
            flag_store(g, FLAG2, sJ)
            g.stamp("p2 flag out")
            rest = cblocks[nd:]
        else:
            for _ in range(min(OPT["nb3"], len(g.bq))):
                g.bq.pop(0)()
            g.wait_vm(ist)
            flag_store(g, FLAG2, sJ)
            g.stamp("p2 flag out")
            while g.bq: g.bq.pop(0)()
            if OPT["winF2"]:
                assert g.kb >= NC
                w_tr(g, KA, NC, 0)
                g.b_rest = (KA + NC, 16 - NC, NC)
            else:
                g.wait_vm(g.b_last)
                w_tr(g, KA, 16, 0)
            g.wait_lg_all()
            g.m0key = None
            rest = cblocks
        if OPT["c_late"]:
            g.c_blocks = rest
        else:
            g.c_blocks = []
            for (k, hf, sl) in rest:
                w_dma_block(g, 1, k, hf, sl)
            w_src(g, 2)
    else:
        g.wait_vm_all()
        flag_store(g, FLAG2, sJ)
        if OPT["pf2"]:
            l2_prefetch(g, 2)


vACC = 96
vXR = 160
NSLOT_MAX = 24


def gemm(g, which):
    NSLOT = OPT["nslot"]
    nk = 32 if which == 1 else 28
    NC = 32 - KA - 16
    K1, K2, K3 = OPT["k1"], OPT["k2"], OPT["k3"]
    assert K1 <= K2 <= 16 and K2 <= K3 <= 28 and K3 - 16 <= K1 and K3 - K1 <= 16 and 28 - 16 <= K3
    Lskip = g.uid("L_nogemm")
    g.sreg = (30, 27)
    if which == 1:
        g(f"s_cmp_eq_u32 s{sR1}, 0")
        g(f"s_cbranch_scc1 {Lskip}")
    else:
        g(f"s_cmp_ge_u32 s{sY}, 28")
        g(f"s_cbranch_scc1 {Lskip}")
        Lh = g.uid("L_have")
        g(f"s_cmp_eq_u32 s{sR1}, 1")
        g(f"s_cbranch_scc1 {Lh}")
        w_src(g, 2)
        g.m0key = None
        for k in range(K2):
            for hf in range(2): w_dma_block(g, 2, k, hf, k % 16)
        g.wait_vm_all()
        w_tr(g, 0, K1, 0)
        g.wait_lg_all()
        for k in range(K2, K3):
            for hf in range(2): w_dma_block(g, 2, k, hf, k % 16)
        g.label(Lh)
    if which == 1:
        g(f"s_lshl_b32 s{sT0}, s{sWV}, 6")
        g(f"v_add_u32 v2, s{sT0}, v1")
        g(f"v_mul_u32_u24 v2, {4*FSTR}, v2")
        g(f"s_lshr_b32 s{sT0}, s{sDT}, 1")
        g(f"s_mul_i32 s{sT0}, s{sT0}, {FSTR}")
        g(f"s_add_u32 s{sT0}, s{sT0}, {FLAG2}")
        g(f"v_add_u32 v2, s{sT0}, v2")
    else:
        g("v_min_u32 v3, 27, v1")
        g("v_lshrrev_b32 v2, 2, v3")
        g(f"s_mul_i32 s{sT0}, s{sWV}, 7")
        g(f"v_add_u32 v2, s{sT0}, v2")
        g("v_mul_u32_u24 v2, 7, v2")
        g(f"v_add_u32 v2, s{sDT}, v2")
        g("v_lshlrev_b32 v2, 2, v2")
        g("v_and_b32 v3, 3, v3")
        g("v_add_u32 v2, v2, v3")
        g(f"v_mul_u32_u24 v2, {FSTR}, v2")
        g(f"v_add_u32 v2, {FLAG3}, v2")
    g("v_and_b32 v6, 31, v1")
    g("v_lshrrev_b32 v7, 5, v1")
    g(f"v_mul_u32_u24 v3, {OCT}, v7")
    g("v_lshl_add_u32 v3, v6, 4, v3")
    g(f"s_mul_i32 s{sT0}, s{sWV}, {2*nk*OCT}")
    g(f"s_lshl_b32 s{sT1}, s{sDT}, 9")
    g(f"s_add_u32 s{sT0}, s{sT0}, s{sT1}")
    g(f"s_add_u32 s{sT0}, s{sT0}, {HNT if which == 1 else UT}")
    g(f"v_add_u32 v3, s{sT0}, v3")
    u_nt = sT2; u_rh = sT3
    g(f"s_lshr_b32 s{u_nt}, s{sWV}, 1")
    g(f"s_and_b32 s{u_rh}, s{sWV}, 1")
    vBI = 16
    if which == 1:
        g(f"s_lshl_b32 s{sT0}, s{sFT}, 6")
        g(f"s_lshl_b32 s{sT1}, s{u_nt}, 5")
        g(f"s_add_u32 s{sT0}, s{sT0}, s{sT1}")
        g(f"s_lshl_b32 s{sT1}, s{u_rh}, 4")
        g(f"s_add_u32 s{sT0}, s{sT0}, s{sT1}")
        g(f"s_lshl_b32 s{sT0}, s{sT0}, 1")
        g("v_lshlrev_b32 v4, 3, v7")
        g(f"v_add_u32 v4, s{sT0}, v4")
        g.vmem(f"buffer_load_dwordx2 v[10:11], v4, {sr(sB1)}, 0 offen")
        g.vmem(f"buffer_load_dwordx2 v[12:13], v4, {sr(sB1)}, 0 offen offset:16")
        g(f"s_lshl_b32 s{sT0}, s{sFT}, 3")
        g(f"s_lshl_b32 s{sT1}, s{u_nt}, 2")
        g(f"s_add_u32 s{sT0}, s{sT0}, s{sT1}")
        g(f"s_lshl_b32 s{sT1}, s{u_rh}, 1")
        g(f"s_add_u32 s{sT0}, s{sT0}, s{sT1}")
        g(f"v_add_u32 v14, s{sT0}, v7")
        g(f"v_mul_u32_u24 v14, {OCT}, v14")
        g("v_lshl_add_u32 v14, v6, 4, v14")
        g(f"s_lshl_b32 s{sT0}, s{sDT}, 9")
        g(f"s_add_u32 s{sT0}, s{sT0}, {UT}")
        g(f"v_add_u32 v14, s{sT0}, v14")
    else:
        g(f"s_lshl_b32 s{sT0}, s{sSTL}, 6")
        g(f"s_lshl_b32 s{sT1}, s{u_nt}, 5")
        g(f"s_add_u32 s{sT0}, s{sT0}, s{sT1}")
        g(f"v_add_u32 v4, s{sT0}, v6")
        g("v_lshlrev_b32 v5, 1, v4")
        g.vmem(f"buffer_load_ushort v10, v5, {sr(sB2)}, 0 offen")
        g("v_mul_u32_u24 v14, 896, v4")
        g(f"s_lshl_b32 s{sT0}, s{sDT}, 7")
        g(f"s_lshl_b32 s{sT1}, s{u_rh}, 6")
        g(f"s_add_u32 s{sT0}, s{sT0}, s{sT1}")
        g(f"v_add_u32 v14, s{sT0}, v14")
        g("v_lshl_add_u32 v14, v7, 4, v14")
    g("v_lshlrev_b32 v4, 4, v1")
    g(f"v_add_u32 v4, {L_RED}, v4")
    g(f"s_lshl_b32 s{sT0}, s{sWV}, 11")
    g(f"v_add_u32 v5, s{sT0}, v4")
    g(f"s_lshl_b32 s{sT0}, s{sWV}, 13")
    g(f"v_add_u32 v4, s{sT0}, v4")
    poll(g, [2], 8)
    g.stamp(f"g{which} flags seen")
    seq = [(pp, k) for pp in range(2) for k in range(nk)]
    ids = {}
    def xissue(n):
        pp, k = seq[n]
        g(f"s_mov_b32 s{sOFF}, {k * 2 * OCT}")
        ids[n] = g.vmem(f"buffer_load_dwordx4 {r(vXR + 4*(n % NSLOT), 4)}, v3, {sr(sWS)}, s{sOFF} offen offset:{PLANE*pp} sc1")
    for n in range(NSLOT):
        xissue(n)
    vHR = 72
    if which == 2:
        g(f"s_mov_b32 s{sT0}, {HH}")
        for q2 in range(2):
            g.vmem(f"buffer_load_dwordx4 {r(vHR + 4*q2, 4)}, v14, {sr(sWS)}, s{sT0} offen offset:{32*q2} sc1")
    r3 = None
    def tr_range(k0, k1):
        for k in range(k0, k1):
            w_tr(g, k, 1, k % 16)
    if which == 2:
        tr_range(K1, K3)
        if K3 < 28:
            g.wait_lg_all()
            g.m0key = None
            for k in range(K3, 28):
                for hf in range(2): r3 = w_dma_block(g, 2, k, hf, k % 16)
    else:
        if g.c_blocks:
            g.m0key = None
            for (k, hf, sl) in g.c_blocks:
                rc = w_dma_block(g, 1, k, hf, sl)
            w_src(g, 2)
        else:
            if (OPT["winF"] or OPT["winF2"]) and g.b_rest[1]:
                w_tr(g, *g.b_rest)
            w_tr(g, 32 - NC, NC, 0)
    if which == 1:
        for i in range(4):
            (unpack_hi if i & 1 else unpack_lo)(g, vBI + i, 10 + (i >> 1))
            (unpack_hi if i & 1 else unpack_lo)(g, vBI + 4 + i, 12 + (i >> 1))
    else:
        unpack_lo(g, vBI, 10)
    g.wait_lg_all()

    def pk(op, d, a_, b_):
        if pkmode[0]:
            g(f"v_pk_{op}_f32 {r(d,2)}, {r(a_,2)}, {r(b_,2)}")
        else:
            g(f"v_{op}_f32 v{d}, v{a_}, v{b_}")
            g(f"v_{op}_f32 v{d+1}, v{a_+1}, v{b_+1}")
    pkmode = [True]
    def reduce_pieces(pp, T):
        acc = lambda nt: vACC + 32*pp + 16*nt
        P = []
        def wr(u0):
            def f():
                if u0 == 0:
                    g("s_barrier")
                for u in (u0, u0 + 1):
                    nt, rh = u >> 1, u & 1
                    for hf in range(2):
                        g.ds(f"ds_write_b128 v5, {r(acc(nt) + 8*rh + 4*hf, 4)} offset:{u*8192 + hf*1024}")
            return f
        P.append(wr(0)); P.append(wr(2))
        def sync():
            g.wait_lg_all()
            g("s_barrier")
            for src in range(4):
                for hf in range(2):
                    g.ds(f"ds_read_b128 {r(32 + 8*src + 4*hf, 4)}, v4 offset:{src*2048 + hf*1024}")
        P.append(sync)
        def add1():
            g.wait_lg_all()
            for i in range(0, 8, 2):
                pk("add", 32+i, 32+i, 40+i)
                pk("add", 48+i, 48+i, 56+i)
        P.append(add1)
        def add2():
            for i in range(0, 8, 2):
                pk("add", T+i, 32+i, 48+i)
        P.append(add2)
        return P

    def gelu_pieces(pp, out):
        T = 32; U = T + 8; Pk = T + 16
        P = []
        def a():
            for i in range(0, 8, 2):
                pk("add", T+i, T+i, vBI+i)
            g(f"s_mov_b32 s{sC1}, 0xc0135761")
            g(f"s_mov_b32 s{sC2}, 0xbdd2d3e8")
            g(f"v_mov_b32 v{T+16}, s{sC1}")
            for i in range(0, 8, 2):
                pk("mul", U+i, T+i, T+i)
        def b():
            for i in range(8):
                g(f"v_fma_f32 v{U+i}, v{U+i}, s{sC2}, v{T+16}")
            for i in range(0, 8, 2):
                pk("mul", U+i, U+i, T+i)
        def c(lo):
            def f():
                for i in range(lo, lo + 4):
                    g(f"v_exp_f32 v{U+i}, v{U+i}")
            return f
        def d():
            for i in range(8):
                g(f"v_add_f32 v{U+i}, 1.0, v{U+i}")
        def e(lo):
            def f():
                for i in range(lo, lo + 4):
                    g(f"v_rcp_f32 v{U+i}, v{U+i}")
            return f
        def h():
            g("s_nop 0")
            for i in range(0, 8, 2):
                pk("mul", T+i, T+i, U+i)
            for i in range(4):
                g(f"v_cvt_pk_bf16_f32 v{Pk+i}, v{T+2*i}, v{T+2*i+1}")
        def st():
            g("s_nop 1")
            g(f"v_permlane32_swap_b32 v{Pk}, v{Pk+2}")
            g(f"v_permlane32_swap_b32 v{Pk+1}, v{Pk+3}")
            out.append(g.vmem(f"buffer_store_dwordx4 {r(Pk,4)}, v14, {sr(sWS)}, 0 offen offset:{PLANE*pp} sc1"))
        return [a, b, c(0), c(4), d, e(0), e(4), h, st]

    n = 0
    sts = []
    ops = []
    w2q = []
    if which == 1:
        g.m0key = None
        w2q = [(lambda k=k, hf=hf: w_dma_block(g, 2, k, hf, k % 16)) for k in range(K1) for hf in range(2)]
    for pp in range(2):
        for k in range(nk):
            if which == 1 and g.c_blocks and pp == 0 and k == 32 - NC - 3:
                g.wait_vm(rc)
                w_tr(g, 32 - NC, NC, 0)
            if which == 1 and g.c_blocks and pp == 0 and k == 32 - NC:
                g.wait_lg_all()
            if r3 is not None and pp == 0 and k == K3 - 3:
                g.wait_vm(r3)
                tr_range(K3, 28)
            if r3 is not None and pp == 0 and k == K3:
                g.wait_lg_all()
            g.wait_vm(ids[n])
            x = r(vXR + 4*(n % NSLOT), 4)
            for nt in range(2):
                acc = r(vACC + 32*pp + 16*nt, 16)
                c = "0" if k == 0 else acc
                w = ar(8*k + 4*nt, 4)
                if which == 1:
                    g(f"v_mfma_f32_32x32x16_bf16 {acc}, {w}, {x}, {c}")
                else:
                    g(f"v_mfma_f32_32x32x16_bf16 {acc}, {x}, {w}, {c}")
                if OPT["xpos"] == 1 and nt == 1 and n + NSLOT < len(seq):
                    xissue(n + NSLOT)
                if OPT["xpos"] == 0 and nt == 0 and n >= 1 and n - 1 + NSLOT < len(seq):
                    xissue(n - 1 + NSLOT)
                if pp == 1 and k >= OPT["gapfrom"]:
                    g.gap(ops, OPT["gap"])
                if which == 1 and nt == 1 and n + NSLOT >= len(seq) and w2q:
                    w2q.pop(0)()
            n += 1
        g.stamp(f"g{which} pass {pp} mfma done")
        g.gap(ops, 1000)
        if pp == 0:
            fns = reduce_pieces(0, 32 if which == 1 else 64)
            if which == 1:
                fns += gelu_pieces(0, [])
            pkmode[0] = bool(OPT["gappk"])
            ops = g.record(fns, sts)
            pkmode[0] = True
        else:
            g.nop(12)
            for f in reduce_pieces(1, 32):
                f()
                for _ in range(2):
                    if w2q: w2q.pop(0)()
            if which == 1:
                gp = gelu_pieces(1, sts)
                for f in gp[:-1]:
                    f()
                    if w2q: w2q.pop(0)()
                while w2q: w2q.pop(0)()
                gp[-1]()
    if which == 1:
        ist = sts[-1]
        g.stamp("g1 u stores issued")
        if g.profile is True: ist = g.vm
    if which == 1:
        g(f"s_mul_i32 s{sT4}, s{sFT}, 7")
        g(f"s_add_u32 s{sT4}, s{sT4}, s{sDT}")
        for k in range(K1, K2):
            for hf in range(2): w_dma_block(g, 2, k, hf, k % 16)
        g.wait_vm(ist)
        flag_store(g, FLAG3, sT4)
        g.stamp("g1 flag out")
        tr_range(0, K1)
        g.wait_lg_all()
        for k in range(K2, K3):
            for hf in range(2): w_dma_block(g, 2, k, hf, k % 16)
    else:
        for i in range(8):
            unpack_lo(g, 40 + i, vHR + i)
            unpack_hi(g, 48 + i, vHR + i)
        for i in range(8):
            g(f"v_add_f32 v{64+i}, v{64+i}, v{vBI}")
            g(f"v_add_f32 v{32+i}, v{32+i}, v{vBI}")
        for i in range(0, 8, 2):
            g(f"v_pk_add_f32 {r(64+i,2)}, {r(64+i,2)}, {r(40+i,2)}")
            g(f"v_pk_add_f32 {r(32+i,2)}, {r(32+i,2)}, {r(48+i,2)}")
        for i in range(8):
            g(f"v_cvt_pk_bf16_f32 v{56+i}, v{64+i}, v{32+i}")
        for q2 in range(2):
            g.vmem(f"buffer_store_dwordx4 {r(56+4*q2,4)}, v14, {sr(sOUT)}, 0 offen offset:{32*q2}")
    g.stamp(f"g{which} done")
    g.label(Lskip)


def finish(g):
    g("s_cmp_eq_u32 s2, 0")
    g("s_cbranch_scc0 L_exit")
    g(f"s_cmp_eq_u32 s{sWV}, 0")
    g("s_cbranch_scc0 L_exit")
    g("v_mov_b32 v2, 0")
    g(f"v_mov_b32 v3, s{sNONCE}")
    g("s_mov_b64 exec, 1")
    g(f"buffer_store_dword v3, v2, {sr(sWS)}, 0 offen sc1")


def build(profile=False, stop_after=9):
    g = G(profile)
    g(f"; @launch grid=({NWG},1,1) block=(256,1,1) lds={LDS_BYTES}")
    g('.amdgcn_target "amdgcn-amd-amdhsa--gfx950"')
    g(".text")
    g(f".globl {KNAME}")
    g(".p2align 8")
    g(f".type {KNAME},@function")
    g(f"{KNAME}:")
    prologue(g)
    g.stamp("start")
    p0(g)
    slot_a(g)
    p1(g)
    if stop_after >= 3: gemm(g, 1)
    if stop_after >= 4: gemm(g, 2)
    g.sreg = (30, 27)
    g.stamp("end")
    finish(g)
    g("L_exit:")
    g("s_endpgm")
    g("L_code_end:")
    g('.section .rodata,"a"')
    g(".p2align 6")
    g(f".amdhsa_kernel {KNAME}")
    g("  .amdhsa_next_free_vgpr 512")
    g("  .amdhsa_next_free_sgpr 102")
    g("  .amdhsa_accum_offset 256")
    g("  .amdhsa_group_segment_fixed_size 0")
    g("  .amdhsa_kernarg_size 112")
    g("  .amdhsa_user_sgpr_count 2")
    g("  .amdhsa_user_sgpr_kernarg_segment_ptr 1")
    g("  .amdhsa_system_sgpr_workgroup_id_x 1")
    g("  .amdhsa_float_denorm_mode_32 3")
    g(".end_amdhsa_kernel")
    return g


def set_opts(argv):
    global KA, RA_W
    for a in argv:
        if a.startswith("--opt="):
            for kv in a[6:].split(","):
                k, v = kv.split("=")
                OPT[k] = int(v)
    KA = OPT.get("ka", KA)
    RA_W = KA * 2048

if __name__ == "__main__":
    set_opts(sys.argv)
    g = build(profile="dbg" if "--dbg" in sys.argv else ("--prof" in sys.argv))
    out = [a for a in sys.argv[1:] if not a.startswith("--")]
    txt = g.text()
    if out:
        open(out[0], "w").write(txt)
    else:
        sys.stdout.write(txt)
```
